```python
import torch

def _softmax(x, axis=-1):
    return torch.softmax(x, dim=axis)
def _gelu(x):
    return torch.nn.functional.gelu(x, approximate="tanh")
def _silu(x):
    return torch.nn.functional.silu(x)
def _sigmoid(x):
    return torch.sigmoid(x)
def _layernorm(x, axis=-1, eps=1e-5):
    m = x.mean(dim=axis, keepdim=True)
    v = x.var(dim=axis, keepdim=True, unbiased=False)
    return (x - m) / torch.sqrt(v + eps)
def _scatter_add(tgt, idx, src, axis=0):
    return tgt.clone().index_add_(axis, idx, src)
def _segment_sum(src, seg, n):
    out = torch.zeros((n,) + src.shape[1:], dtype=src.dtype)
    return out.index_add_(0, seg, src)
def _pad(x, pw):
    flat = tuple(v for pair in reversed(pw) for v in pair)
    return torch.nn.functional.pad(x, flat)

kernel_name = 'interleave_layers__linear_attn_block__spectral_fnet__prompt'

def setup_inputs():

    _w = (lambda a: (lambda t: t.to(torch.bfloat16) if t.is_floating_point() else t)(torch.as_tensor(a)))
    def _A_setup():
        B, S, D = 1, 2048, 1024
        return {
            "x": _w((lambda *s: torch.randn(*s, dtype=torch.bfloat16) * 0.4)(B, S, D)),
            "wqkv": _w((lambda *s: torch.randn(*s, dtype=torch.bfloat16) * 1.6)(D, 3 * D)),
            "wo": _w((lambda *s: torch.randn(*s, dtype=torch.bfloat16) * 1.6)(D, D)),
        }
    _A_in = _A_setup()

    def _B_setup():
        B, S, D = 1, 2048, 1024
        ns = torch.arange(S)[:, None] * torch.arange(S)[None, :]
        nd = torch.arange(D)[:, None] * torch.arange(D)[None, :]
        Ws_re = torch.cos(-2.0 * torch.pi * ns / S).to(float)
        Ws_im = torch.sin(-2.0 * torch.pi * ns / S).to(float)
        Wd_re = torch.cos(-2.0 * torch.pi * nd / D).to(float)
        Wd_im = torch.sin(-2.0 * torch.pi * nd / D).to(float)
        return {
            "x": _w((lambda *s: torch.randn(*s, dtype=torch.bfloat16) * 0.4)(B, S, D)),
            "dft_seq_re": _w(Ws_re),
            "dft_seq_im": _w(Ws_im),
            "dft_hid_re": _w(Wd_re),
            "dft_hid_im": _w(Wd_im),
        }
    _B_in = _B_setup()

    return {
        "A_x": _A_in["x"],
        "A_wqkv": _A_in["wqkv"],
        "A_wo": _A_in["wo"],
        "B_x": _B_in["x"],
        "B_dft_seq_re": _B_in["dft_seq_re"],
        "B_dft_seq_im": _B_in["dft_seq_im"],
        "B_dft_hid_re": _B_in["dft_hid_re"],
        "B_dft_hid_im": _B_in["dft_hid_im"],
    }

def reference(A_x, A_wqkv, A_wo, B_x, B_dft_seq_re, B_dft_seq_im, B_dft_hid_re, B_dft_hid_im):
    def _A_ref(x, wqkv, wo):
        B, S, D = x.shape
        H = 32; Dh = D // H
        qkv = (lambda x, *d: x.permute(*d))((x @ wqkv).reshape(B, S, 3, H, Dh), 2, 0, 3, 1, 4)
        q, k, v = qkv[0], qkv[1], qkv[2]
        phi = lambda t: torch.where(t > 0, t + 1, torch.exp(t)) + 1e-6
        pq, pk = phi(q), phi(k)
        kv = torch.einsum("bhsd,bhse->bhde", pk, v)
        z = torch.einsum("bhsd->bhd", pk)
        num = torch.einsum("bhqd,bhde->bhqe", pq, kv)
        den = torch.einsum("bhqd,bhd->bhq", pq, z)[..., None] + 1e-6
        o = num / den
        return (lambda x, *d: x.permute(*d))(o, 0, 2, 1, 3).reshape(B, S, D) @ wo

    def _B_ref(x, dft_seq_re, dft_seq_im, dft_hid_re, dft_hid_im):
        a = torch.einsum("bsd,ed->bse", x, dft_hid_re)
        b = torch.einsum("bsd,ed->bse", x, dft_hid_im)
        y = torch.einsum("ts,bse->bte", dft_seq_re, a) - torch.einsum("ts,bse->bte", dft_seq_im, b)
        return y

    x = A_x
    x = x + _A_ref(_layernorm(x, axis=-1), A_wqkv, A_wo)
    x = x + _B_ref(_layernorm(x, axis=-1), B_dft_seq_re, B_dft_seq_im, B_dft_hid_re, B_dft_hid_im)
    x = x + _A_ref(_layernorm(x, axis=-1), A_wqkv, A_wo)
    x = x + _B_ref(_layernorm(x, axis=-1), B_dft_seq_re, B_dft_seq_im, B_dft_hid_re, B_dft_hid_im)
    return x
```

```python
import re

TRANS = ("v_exp_f32", "v_log_f32", "v_rcp_f32", "v_rsq_f32", "v_sqrt_f32", "v_sin_f32", "v_cos_f32")
MFMA_PASSES = {"v_mfma_f32_32x32x16_bf16": 8, "v_mfma_f32_16x16x32_bf16": 4}
RMW_DST = ("v_fmac_f32", "v_dot2c_f32_bf16", "v_writelane_b32", "v_permlane32_swap_b32", "v_permlane16_swap_b32")

_reg_re = re.compile(r"(?<![\w.])(-|abs\()?\b([vas])(\d+)\b|(?<![\w.])([vas])\[(\d+):(\d+)\]")

def regs_of(op):
    op = op.strip()
    out = []
    m = re.fullmatch(r"-?\|?(?:abs\()?([vas])\[(\d+):(\d+)\]\)?\|?", op)
    if m:
        return [(m.group(1), i) for i in range(int(m.group(2)), int(m.group(3)) + 1)]
    m = re.fullmatch(r"-?\|?(?:abs\()?([vas])(\d+)\)?\|?", op)
    if m:
        return [(m.group(1), int(m.group(2)))]
    if op == "vcc": return [("s", 106), ("s", 107)]
    if op == "vcc_lo": return [("s", 106)]
    if op == "exec": return [("s", 126), ("s", 127)]
    if op == "m0": return [("s", 124)]
    return out

class Ins:
    __slots__ = ("text", "op", "w", "r", "kind", "passes", "srcC", "srcAB", "dpp", "label", "target", "storedata", "lds")
    def __init__(self, text):
        self.text = text; self.w = set(); self.r = set(); self.passes = 0; self.srcC = set(); self.srcAB = set()
        self.dpp = False; self.label = None; self.target = None; self.storedata = set(); self.lds = False
        t = text.split(";")[0].strip()
        if not t or t.startswith("."):
            self.kind = "none"; self.op = ""; return
        if t.endswith(":"):
            self.kind = "label"; self.op = ""; self.label = t[:-1]; return
        parts = t.split(None, 1); op = parts[0]; self.op = op
        rest = parts[1] if len(parts) > 1 else ""
        mods = ""
        ops = [o.strip() for o in rest.split(",")] if rest else []
        if ops:
            last = ops[-1].split(None, 1)
            if len(last) > 1:
                ops[-1] = last[0]; mods = last[1]
            elif last and (":" in last[0] and not last[0].startswith(("v[", "a[", "s["))):
                pass
        R = lambda i: set(regs_of(ops[i])) if i < len(ops) else set()
        allr = lambda a: set().union(*[R(i) for i in range(a, len(ops))]) if len(ops) > a else set()
        base = op.replace("_e32", "").replace("_e64", "").replace("_dpp", "")
        if op.startswith("v_mfma"):
            self.kind = "mfma"; self.passes = MFMA_PASSES[op]
            self.w = R(0); self.srcAB = R(1) | R(2); self.srcC = R(3); self.r = self.srcAB | self.srcC
        elif op.startswith("v_"):
            self.kind = "valu"
            self.dpp = ("row_" in mods) or ("quad_perm" in mods) or op.endswith("_dpp")
            if base.startswith("v_cmp"):
                self.w = R(0); self.r = allr(1)
            elif base in ("v_permlane32_swap_b32", "v_permlane16_swap_b32"):
                self.w = R(0) | R(1); self.r = R(0) | R(1)
            elif base.startswith(("v_add_co", "v_sub_co", "v_addc_co")):
                self.w = R(0) | R(1); self.r = allr(2)
            else:
                self.w = R(0); self.r = allr(1)
                if base in RMW_DST: self.r |= R(0)
                if base == "v_cndmask_b32" and len(ops) == 3: self.r |= {("s", 106), ("s", 107)}
        elif op.startswith("ds_"):
            self.kind = "ds"
            if op.startswith("ds_read") or op.startswith("ds_bpermute") or op.startswith("ds_swizzle"):
                self.w = R(0); self.r = allr(1)
                if "d16" in op: self.r |= R(0)
            else:
                self.r = allr(0)
        elif op.startswith("buffer_") or op.startswith("global_"):
            self.kind = "vmem"
            self.lds = " lds" in (" " + mods) or mods.endswith("lds")
            if op.startswith("buffer_load"):
                if self.lds: self.r = allr(0) | {("s", 124)}
                else: self.w = R(0); self.r = allr(1)
            elif op.startswith("buffer_store"):
                self.r = allr(0)
                if op.endswith(("x3", "x4")): self.storedata = R(0)
            elif op.startswith("buffer_atomic"):
                self.r = allr(0)
                if "sc0" in mods: self.w = R(0)
            elif op.startswith("global_load"):
                self.w = R(0); self.r = allr(1)
            elif op.startswith("global_store"):
                self.r = allr(0)
                if op.endswith(("x3", "x4")): self.storedata = R(1)
            elif op in ("buffer_inv", "buffer_wbl2"):
                pass
            else:
                raise ValueError("unclassified vmem: " + text)
        elif op.startswith("s_"):
            self.kind = "salu"
            if op in ("s_branch",) or op.startswith("s_cbranch"):
                self.target = ops[0]
            elif op in ("s_waitcnt", "s_barrier", "s_nop", "s_endpgm", "s_sleep", "s_setprio"):
                pass
            elif op.startswith("s_cmp"):
                self.r = allr(0)
            elif op.startswith(("s_load", "s_memtime", "s_memrealtime")):
                self.w = R(0); self.r = allr(1)
            else:
                self.w = R(0); self.r = allr(1)
                if "saveexec" in op: self.w |= {("s", 126), ("s", 127)}
        else:
            raise ValueError("unclassified: " + text)
    def states(self):
        if self.kind in ("none", "label"): return 0
        if self.op == "s_nop": return int(self.text.split(";")[0].split()[1], 0) + 1
        return 1

def isv(regs): return {x for x in regs if x[0] in "va"}
def iss(regs): return {x for x in regs if x[0] == "s"}

def need(p, c):
    n = 0
    if p.kind == "valu":
        wv = isv(p.w); ws = iss(p.w)
        if wv:
            if c.kind == "valu":
                if c.op.startswith(("v_readfirstlane", "v_readlane")) and wv & c.r: n = max(n, 1)
                if c.op.startswith("v_permlane") and wv & c.r: n = max(n, 2)
                if c.dpp and wv & c.r: n = max(n, 2)
                if p.op.replace("_e32", "").replace("_e64", "") in TRANS and wv & c.r: n = max(n, 1)
            if c.kind == "mfma" and wv & c.r: n = max(n, 2)
        if ws:
            if c.kind == "valu" and ws & c.r: n = max(n, 4 if c.op.startswith(("v_readlane", "v_writelane")) else 2)
            if c.kind == "mfma" and ws & c.r: n = max(n, 4)
            if c.kind == "vmem" and ws & c.r: n = max(n, 5)
            if c.kind == "salu" and ws & c.r: n = max(n, 1)
    if p.kind == "mfma":
        big = p.passes == 8
        if c.kind == "mfma":
            if p.w & c.srcAB: n = max(n, 12 if big else 8)
            if p.w & c.srcC:
                if not (p.w == c.srcC and p.passes == c.passes): n = max(n, 10 if big else 6)
            if p.w & c.w and not (p.w == c.w and p.passes == c.passes and c.srcC == c.w):
                n = max(n, 10 if big else 6)
        elif c.kind in ("valu", "vmem", "ds"):
            if p.w & (c.r | c.w): n = max(n, 12 if big else 8)
            if c.kind == "valu" and p.srcC & c.w: n = max(n, 7 if big else 3)
    if p.kind == "salu" and ("s", 124) in p.w and c.kind == "vmem" and c.lds: n = max(n, 1)
    if p.kind == "vmem" and p.storedata:
        if c.kind == "valu" and p.storedata & c.w: n = max(n, 2)
        elif c.kind in ("mfma", "ds", "vmem") and p.storedata & c.w: n = max(n, 1)
    return n

MAXD = 13
def fix_hazards(lines):
    ins = [Ins(l) for l in lines]
    while True:
        labels = {x.label: i for i, x in enumerate(ins) if x.label}
        jumps = {}
        for i, x in enumerate(ins):
            if x.target is not None: jumps.setdefault(labels[x.target], []).append(i)
        def preds(i):
            out = []
            if i > 0 and ins[i - 1].op not in ("s_branch", "s_endpgm"): out.append(i - 1)
            if ins[i].label and i in jumps: out += jumps[i]
            return out
        pend = {}
        for ci, c in enumerate(ins):
            if c.kind in ("none", "label"): continue
            short = 0
            stack = [(p, 0) for p in preds(ci)]
            seen = {}
            while stack:
                pi, d = stack.pop()
                if d >= MAXD or seen.get(pi, 99) <= d: continue
                seen[pi] = d
                p = ins[pi]
                if p.kind not in ("none", "label"):
                    nn = need(p, c)
                    if nn > d: short = max(short, nn - d)
                nd = d + p.states()
                for q in preds(pi): stack.append((q, nd))
            if short: pend[ci] = short
        if not pend: break
        chosen = {}
        last = -100
        for ci in sorted(pend):
            if ci - last > MAXD + 1:
                chosen[ci] = pend[ci]; last = ci
        new = []
        for ci, c in enumerate(ins):
            if ci in chosen: new.append(Ins("  s_nop %d" % (chosen[ci] - 1)))
            new.append(c)
        ins = new
    return [x.text for x in ins]

class K:
    def __init__(self):
        self.L = []; self.vm = 0; self.lg = 0; self.uid = 0
    def __call__(self, s):
        for line in s.split("\n"):
            t = line.strip()
            if not t: continue
            self.L.append("  " + t if not t.endswith(":") else t)
            op = t.split()[0]
            if op.startswith(("buffer_", "global_")) and op not in ("buffer_inv", "buffer_wbl2"): self.vm += 1
            elif op.startswith("ds_"): self.lg += 1
        return self
    def raw(self, s):
        for line in s.split("\n"):
            t = line.strip()
            if t: self.L.append("  " + t if not t.endswith(":") else t)
        return self
    def vtok(self): return self.vm
    def ltok(self): return self.lg
    def wait(self, vm=None, lg=None):
        parts = []
        if vm is not None:
            n = self.vm - vm; assert n >= 0
            if n <= 62: parts.append("vmcnt(%d)" % n)
            else: parts.append("vmcnt(62)")
        if lg is not None:
            n = self.lg - lg; assert n >= 0
            parts.append("lgkmcnt(%d)" % min(n, 15)) if n <= 15 else parts.append("lgkmcnt(14)")
        if parts: self.L.append("  s_waitcnt " + " ".join(parts))
    def label(self, base):
        self.uid += 1; return "L_%s_%d" % (base, self.uid)
    def text(self): return "\n".join(fix_hazards(self.L)) + "\n"

def v(i, n=1): return "v%d" % i if n == 1 else "v[%d:%d]" % (i, i + n - 1)
def a(i, n=1): return "a%d" % i if n == 1 else "a[%d:%d]" % (i, i + n - 1)
def s(i, n=1): return "s%d" % i if n == 1 else "s[%d:%d]" % (i, i + n - 1)
```

```python
WS_SIZE = 268435456
NONCE = 0
FL_A0 = 4096
FL_S1 = FL_A0 + 16 * 128
FL_S2 = FL_S1 + 32 * 128
FL_S5 = FL_S2 + 32 * 128
CNT = FL_S5 + 16 * 128
STAMPS = 0x10000
FTAB = 0x20000
CTAB = 0x28000
HTAB = 0x80000
STX = 0x100000
KVX = 0x200000
KVZ = 0x400000
WOP = 0x600000
HB = 0x800000
XP = 0x1000000
OB = 0x2000000
TB = 0x3000000
```

```python
from asm import K, v, a, s
from layout import *
import gen as G
from gen import (WS, WQ, OUTS, sR, sG, sWv, sNonce, sL, sA0, sWf0, vL16, vW, vWq, vTr, vTrH, NRING, RING_SLOT,
                 w_dma, signal, poll16, stamp, ln_tail, f32, sSpin, SPIN_MAX)

MF32 = "v_mfma_f32_32x32x16_bf16"
MF16 = "v_mfma_f32_16x16x32_bf16"
LOG2E = f32(1.4426950408889634)
EPS6 = f32(1e-6)
DM = 6
accK, accV, accQ, BR = 16, 48, 80, 112
RED, ZR, KVF, ZF = 131072, 114688, 115712, 119808
vRES = 232

def phi(k, regs, tmp):
    for g0 in range(0, len(regs), 8):
        grp = regs[g0:g0 + 8]
        for i, x in enumerate(grp): k(f"v_min_f32 {v(tmp+i)}, 0, {v(x)}")
        for i, x in enumerate(grp): k(f"v_sub_f32 {v(x)}, {v(x)}, {v(tmp+i)}")
        for i, x in enumerate(grp): k(f"v_mul_f32 {v(tmp+i)}, 0x{LOG2E:08x}, {v(tmp+i)}")
        for i, x in enumerate(grp): k(f"v_exp_f32 {v(tmp+i)}, {v(tmp+i)}")
        for i, x in enumerate(grp): k(f"v_add_f32 {v(x)}, 0x{EPS6:08x}, {v(x)}")
        for i, x in enumerate(grp): k(f"v_add_f32 {v(x)}, {v(x)}, {v(tmp+i)}")

def pack(k, dst, src, n):
    for i in range(n): k(f"v_cvt_pk_bf16_f32 {v(dst+i)}, {v(src+2*i)}, {v(src+2*i+1)}")

def rot_loads(k, j, vaddr, srd=WS, sc=" sc1"):
    for i in range(4):
        off = f" offset:{i*1024}" if i else ""
        k(f"buffer_load_dwordx4 {a(16*j+4*i,4)}, {v(vaddr)}, {srd}, {s(sA0+j)} offen{off}{sc}")
    return k.vtok()

def p1(k, cfg):
    vA = 10 + 3
    Ls = k.label("pf")
    k(f"s_cmp_eq_u32 {s(sL)}, 0\ns_cbranch_scc1 {Ls}")
    tD = {}
    for j in range(5): tD[j] = w_dma(k, j)
    k(f"{Ls}:")
    for j in (5, 6): tD[j] = w_dma(k, j)
    k(f"""s_mul_i32 s80, {s(sL)}, {FL_S5 - FL_A0}
    s_lshl_b32 s79, {s(sR)}, 7
    s_add_u32 s80, s80, s79
    s_add_u32 s80, s80, {FL_A0}""")
    poll16(k, 80)
    stamp(k, 2)
    k(f"""s_lshl_b32 s79, {s(sR)}, 2
    s_add_u32 s79, s79, {s(sWv)}
    s_lshl_b32 s79, s79, 16
    s_lshl_b32 s80, {s(sL)}, 22
    s_add_u32 s79, s79, s80
    s_add_u32 s79, s79, {HB}
    v_add_u32 {v(vA)}, s79, {v(vL16)}""")
    tA = {}
    for j in range(5): tA[j] = rot_loads(k, j, vA)
    ops = []
    for j in range(16):
        for w in range(4):
            for part, acc in ((0, accK), (1, accV)):
                for h in range(2):
                    ops.append((j, acc + 16 * h, 16 * j + 4 * w, (j % NRING) * RING_SLOT + w * 4096 + part * 2048, h, False,
                                j == 0 and w == 0))
    for jj in range(8):
        for sh in range(2):
            for w in range(4):
                for h in range(2):
                    ops.append((16 + jj, accQ + 16 * h, 16 * (2 * jj + sh) + 4 * w,
                                ((16 + jj) % NRING) * RING_SLOT + sh * 8192 + w * 2048, h, True,
                                jj == 0 and sh == 0 and w == 0))
    tR = {}
    def reads(m):
        j, acc, ar, off, h, isq, first = ops[m]
        b = BR + 4 * (m % 8)
        base = vTr + h if off + 512 < 65536 else vTrH + h
        o = off if off + 512 < 65536 else off - 65536
        assert 0 <= o and o + 512 < 65536
        k(f"ds_read_b64_tr_b16 {v(b,2)}, {v(base)} offset:{o}")
        k(f"ds_read_b64_tr_b16 {v(b+2,2)}, {v(base)} offset:{o+512}")
        tR[m] = k.ltok()
    def Y(j):
        tok = tD[j] if j >= 16 else max(tD[j], tA[j])
        k.wait(vm=tok)
        k("s_barrier")
        if j + 5 <= 15 and j + 5 not in tA: tA[j + 5] = rot_loads(k, j + 5, vA)
        if j >= 2 and j + 5 <= 23: tD[j + 5] = w_dma(k, j + 5)
    Y(0)
    for m in range(DM): reads(m)
    n = len(ops)
    for m in range(n):
        j, acc, ar, off, h, isq, first = ops[m]
        b = BR + 4 * (m % 8)
        k.wait(lg=tR[m])
        c = "0" if first else v(acc, 16)
        if isq: k(f"{MF32} {v(acc,16)}, {v(b,4)}, {a(ar,4)}, {c}")
        else: k(f"{MF32} {v(acc,16)}, {a(ar,4)}, {v(b,4)}, {c}")
        if m + DM < n:
            if (m + DM) % 16 == 0: Y((m + DM) // 16)
            reads(m + DM)
    stamp(k, 3)
    k("s_barrier")
    wo_dma(k, early=True)
    k(f"""v_and_b32 v10, 31, v0
    v_lshlrev_b32 v10, 11, v10
    v_lshrrev_b32 v11, 5, v0
    v_lshl_add_u32 v10, v11, 6, v10
    s_lshl_b32 s79, {s(sR)}, 2
    s_add_u32 s79, s79, {s(sWv)}
    s_lshl_b32 s79, s79, 16
    s_lshl_b32 s80, {s(sG)}, 7
    s_add_u32 s79, s79, s80
    s_lshl_b32 s80, {s(sL)}, 23
    s_add_u32 s79, s79, s80
    s_add_u32 s79, s79, {XP}""")
    for i in range(4):
        k(f"buffer_load_dwordx4 {v(vRES+4*i,4)}, v10, {WS}, s79 offen offset:{16*i} sc1")
    tRes = k.vtok()
    Pk, Pv, Pq, KVa, vZ, tmp = 144, 160, 176, 192, 224, 120
    phi(k, list(range(accK, accK + 32)), tmp)
    for h in range(2):
        x = accK + 16 * h
        k(f"v_add_f32 {v(vZ+h)}, {v(x)}, {v(x+1)}")
        for i in range(2, 16): k(f"v_add_f32 {v(vZ+h)}, {v(vZ+h)}, {v(x+i)}")
    pack(k, Pk, accK, 16)
    pack(k, Pv, accV, 16)
    for h in range(2):
        k(f"{MF32} {v(KVa+16*h,16)}, {v(Pk+8*h,4)}, {v(Pv+8*h,4)}, 0")
    for h in range(2):
        k(f"{MF32} {v(KVa+16*h,16)}, {v(Pk+8*h+4,4)}, {v(Pv+8*h+4,4)}, {v(KVa+16*h,16)}")
    for h in range(2):
        k(f"""v_mov_b32 {v(vZ+2+h)}, {v(vZ+h)}
        v_permlane32_swap_b32 {v(vZ+h)}, {v(vZ+2+h)}
        v_add_f32 {v(vZ+h)}, {v(vZ+h)}, {v(vZ+2+h)}""")
    k(f"""s_lshl_b32 s79, {s(sWv)}, 13
    s_add_u32 s79, s79, {RED}
    v_add_u32 v10, s79, {v(vL16)}
    v_and_b32 v11, 31, v0
    v_lshlrev_b32 v11, 2, v11
    s_lshl_b32 s79, {s(sWv)}, 8
    s_add_u32 s79, s79, {ZR}
    v_add_u32 v11, s79, v11""")
    for h in range(2):
        for q in range(4):
            k(f"ds_write_b128 v10, {v(KVa+16*h+4*q,4)} offset:{h*4096+q*1024}")
    k(f"""s_mov_b32 exec_hi, 0
    ds_write_b32 v11, {v(vZ)}
    ds_write_b32 v11, {v(vZ+1)} offset:128
    s_mov_b64 exec, -1
    s_waitcnt lgkmcnt(0)
    s_barrier""")
    k(f"""s_lshl_b32 s79, {s(sWv)}, 11
    s_add_u32 s79, s79, {RED}
    v_add_u32 v10, s79, {v(vL16)}
    v_lshlrev_b32 v11, 2, v0
    v_add_u32 v12, {ZR}, v11""")
    for w in range(4):
        for q in range(2):
            k(f"ds_read_b128 {v(16+8*w+4*q,4)}, v10 offset:{w*8192+q*1024}")
    for w in range(4): k(f"ds_read_b32 {v(48+w)}, v12 offset:{w*256}")
    k("s_waitcnt lgkmcnt(0)")
    for i in range(8):
        k(f"""v_add_f32 {v(16+i)}, {v(16+i)}, {v(24+i)}
        v_add_f32 {v(32+i)}, {v(32+i)}, {v(40+i)}""")
    for i in range(8): k(f"v_add_f32 {v(16+i)}, {v(16+i)}, {v(32+i)}")
    pack(k, 24, 16, 4)
    k(f"""v_add_f32 v48, v48, v49
    v_add_f32 v50, v50, v51
    v_add_f32 v48, v48, v50
    s_lshl_b32 s79, {s(sG)}, 4
    s_add_u32 s79, s79, {s(sR)}
    s_lshl_b32 s80, s79, 12
    s_lshl_b32 s81, {s(sWv)}, 10
    s_add_u32 s80, s80, s81
    s_lshl_b32 s81, {s(sL)}, 20
    s_add_u32 s80, s80, s81
    s_add_u32 s80, s80, {KVX}
    buffer_store_dwordx4 v[24:27], {v(vL16)}, {WS}, s80 offen sc1
    s_lshl_b32 s80, s79, 8
    s_lshl_b32 s81, {s(sL)}, 16
    s_add_u32 s80, s80, s81
    s_add_u32 s80, s80, {KVZ}""")
    Lz = k.label("zst")
    k.raw(f"""s_cmp_lg_u32 {s(sWv)}, 0
    s_cbranch_scc1 {Lz}
    buffer_store_dword v48, v11, {WS}, s80 offen sc1
    {Lz}:""")
    k(f"""s_waitcnt vmcnt(0)
    s_barrier
    s_lshl_b32 s79, {s(sL)}, 4
    s_add_u32 s79, s79, {s(sG)}
    s_lshl_b32 s79, s79, 7
    s_add_u32 s82, s79, {FL_S1}
    s_lshl_b32 s80, {s(sR)}, 2
    s_add_u32 s80, s80, s82""")
    signal(k, 80)
    stamp(k, 4)
    phi(k, list(range(accQ, accQ + 32)), tmp)
    pack(k, Pq, accQ, 16)
    poll16(k, 82)
    stamp(k, 5)
    k(f"""s_lshl_b32 s80, {s(sG)}, 16
    s_lshl_b32 s81, {s(sWv)}, 10
    s_add_u32 s80, s80, s81
    s_lshl_b32 s81, {s(sL)}, 20
    s_add_u32 s80, s80, s81
    s_add_u32 s80, s80, {KVX}""")
    toks = []
    for r in range(16):
        k(f"buffer_load_dwordx4 {v(16+4*r,4)}, {v(vL16)}, {WS}, s80 offen sc1")
        toks.append(k.vtok())
        if r < 15: k("s_add_u32 s80, s80, 4096")
    k(f"""s_lshl_b32 s80, {s(sG)}, 12
    s_lshl_b32 s81, {s(sL)}, 16
    s_add_u32 s80, s80, s81
    s_add_u32 s80, s80, {KVZ}
    v_lshlrev_b32 v11, 2, v0""")
    for r in range(16):
        off = f" offset:{r*256}" if r else ""
        k(f"buffer_load_dword {v(96+r)}, v11, {WS}, s80 offen{off} sc1")
    tz = k.vtok()
    k(f"""v_mov_b32 v120, 0x00003f80
    v_mov_b32 v121, 0x3f800000""")
    S = 112
    for i in range(8): k(f"v_mov_b32 {v(S+i)}, 0")
    for r in range(16):
        k.wait(vm=toks[r])
        for i in range(4):
            k(f"v_dot2_f32_bf16 {v(S+2*i)}, {v(16+4*r+i)}, v120, {v(S+2*i)}")
            k(f"v_dot2_f32_bf16 {v(S+2*i+1)}, {v(16+4*r+i)}, v121, {v(S+2*i+1)}")
    pack(k, 124, S, 4)
    k.wait(vm=tz)
    for i in range(8): k(f"v_add_f32 {v(96+i)}, {v(96+i)}, {v(104+i)}")
    for i in range(4): k(f"v_add_f32 {v(96+i)}, {v(96+i)}, {v(100+i)}")
    k(f"""v_add_f32 v96, v96, v98
    v_add_f32 v97, v97, v99
    v_add_f32 v96, v96, v97
    v_cvt_pk_bf16_f32 v96, v96, v96
    s_lshl_b32 s79, {s(sWv)}, 10
    s_add_u32 s79, s79, {KVF}
    v_add_u32 v10, s79, {v(vL16)}
    ds_write_b128 v10, v[124:127]
    v_lshlrev_b32 v11, 1, v0
    v_add_u32 v11, {ZF}, v11
    ds_write_b16 v11, v96
    s_waitcnt lgkmcnt(0)
    s_barrier
    v_add_u32 v10, {KVF}, {v(vL16)}
    v_lshrrev_b32 v11, 5, v0
    v_lshlrev_b32 v11, 3, v11
    v_add_u32 v11, {ZF}, v11""")
    KVo, Zo = 16, 32
    for q in range(4): k(f"ds_read_b128 {v(KVo+4*q,4)}, v10 offset:{q*1024}")
    for h in range(2):
        for i in range(2):
            o0 = (h * 64 + 32 * i) // 8
            k(f"ds_read2_b64 {v(Zo+8*h+4*i,4)}, v11 offset0:{o0} offset1:{o0+2}")
    k("s_waitcnt lgkmcnt(0)\ns_barrier")
    wo_dma(k, early=False)
    NUM, DEN = 48, 80
    for h in range(2):
        k(f"{MF32} {v(NUM+16*h,16)}, {v(KVo+8*h,4)}, {v(Pq+8*h,4)}, 0")
        k(f"{MF32} {v(DEN+16*h,16)}, {v(Zo+8*h,4)}, {v(Pq+8*h,4)}, 0")
    for h in range(2):
        k(f"{MF32} {v(NUM+16*h,16)}, {v(KVo+8*h+4,4)}, {v(Pq+8*h+4,4)}, {v(NUM+16*h,16)}")
        k(f"{MF32} {v(DEN+16*h,16)}, {v(Zo+8*h+4,4)}, {v(Pq+8*h+4,4)}, {v(DEN+16*h,16)}")
    for h in range(2):
        k(f"v_add_f32 {v(120+h)}, 0x{EPS6:08x}, {v(DEN+16*h)}")
    for h in range(2): k(f"v_rcp_f32 {v(120+h)}, {v(120+h)}")
    for h in range(2):
        for i in range(16): k(f"v_mul_f32 {v(NUM+16*h+i)}, {v(NUM+16*h+i)}, {v(120+h)}")
    pack(k, 16, NUM, 16)
    k(f"""s_lshl_b32 s79, {s(sR)}, 2
    s_add_u32 s79, s79, {s(sWv)}
    s_lshl_b32 s79, s79, 16
    s_lshl_b32 s80, {s(sG)}, 12
    s_add_u32 s79, s79, s80
    s_lshl_b32 s80, {s(sL)}, 22
    s_add_u32 s79, s79, s80
    s_add_u32 s79, s79, {OB}""")
    for i in range(4):
        k(f"buffer_store_dwordx4 {v(16+4*i,4)}, {v(vL16)}, {WS}, s79 offen offset:{i*1024} sc1")
    k(f"""s_waitcnt vmcnt(0)
    s_barrier
    s_lshl_b32 s79, {s(sL)}, 4
    s_add_u32 s79, s79, {s(sR)}
    s_lshl_b32 s79, s79, 7
    s_add_u32 s82, s79, {FL_S2}
    s_lshl_b32 s80, {s(sG)}, 2
    s_add_u32 s80, s80, s82""")
    signal(k, 80)
    stamp(k, 6)

def wo_dma(k, early):
    for nt in range(2):
        for t in range(4):
            late = nt == 1 and t == 3
            if late == early: continue
            k(f"""s_lshl_b32 s79, {s(sWv)}, 12
            s_add_u32 m0, s79, {nt*65536 + t*16384}
            s_lshl_b32 s80, {s(sG)}, 17
            s_add_u32 s80, s80, {WOP + nt*65536}""")
            k(f"""s_add_u32 s81, {s(G.sSt0)}, {s(sWv)}
            s_add_u32 s81, s81, {4*t}
            s_and_b32 s81, s81, 15
            s_lshl_b32 s81, s81, 12
            s_add_u32 s80, s80, s81""")
            for i in range(4):
                off = f" offset:{i*1024}" if i else ""
                k(f"buffer_load_dwordx4 {v(vL16)}, {WS}, s80 offen{off} sc1 lds")
    if not early:
        k(f"""s_lshl_b32 s79, {s(sWv)}, 13
        s_lshl_b32 s80, {s(sG)}, 15
        s_add_u32 s80, s80, s79
        s_add_u32 s80, s80, {HTAB}""")
        for t in range(2):
            k(f"s_add_u32 m0, s79, {131072 + t*4096}")
            for i in range(4):
                off = f" offset:{i*1024}" if i else ""
                k(f"buffer_load_dwordx4 {v(vL16)}, {WS}, s80 offen{off} sc1 lds")
            if t == 0: k("s_add_u32 s80, s80, 4096")

def rest(k, toks, cfg):
    k("L_LAYER:")
    p1(k, cfg)
    if cfg["stop"] == "p1": return
    import phases2
    phases2.p2(k, cfg)
    if cfg["stop"] == "p2": return
    phases2.p3(k, cfg)
    if cfg["stop"] == "p3": return
    k(f"""s_add_u32 {s(sL)}, {s(sL)}, 1
    s_cmp_eq_u32 {s(sL)}, 1
    s_cbranch_scc1 L_LAYER""")
```

```python
from asm import K, v, a, s
from layout import *
import gen as G
from gen import (WS, sR, sG, sWv, sNonce, sL, vL16, signal, poll16, stamp, ln_tail, f32, sSpin, SPIN_MAX)
from phases import MF32, MF16, rot_loads, pack, vRES, BR, DM

def xhalf_sum(k, r, t):
    k(f"""v_mov_b32 {v(t)}, {v(r)}
    v_permlane32_swap_b32 {v(r)}, {v(t)}
    v_add_f32 {v(r)}, {v(r)}, {v(t)}""")

def p2(k, cfg):
    vA, vB1 = 13, 12
    poll16(k, 82)
    stamp(k, 7)
    k(f"""s_lshl_b32 s79, {s(sR)}, 2
    s_add_u32 s79, s79, {s(sWv)}
    s_lshl_b32 s79, s79, 16
    s_lshl_b32 s80, {s(sL)}, 22
    s_add_u32 s79, s79, s80
    s_add_u32 s79, s79, {OB}
    v_add_u32 {v(vA)}, s79, {v(vL16)}
    v_add_u32 {v(vB1)}, 0x10000, {v(vL16)}""")
    tA = {}
    for j in range(15): tA[j] = rot_loads(k, j, vA)
    acc = 16
    n = 128
    tR = {}
    def reads(m):
        i, nt = m >> 1, m & 1
        k(f"ds_read_b128 {v(BR+4*(m%8),4)}, {v(vB1 if nt else vL16)} offset:{i*1024}")
        tR[m] = k.ltok()
    for m in range(DM): reads(m)
    vF = 144
    for m in range(n):
        i, nt = m >> 1, m & 1
        if m % 8 == 0: k.wait(vm=tA[m // 8], lg=tR[m])
        else: k.wait(lg=tR[m])
        c = "0" if i == 0 else v(acc + 16 * nt, 16)
        k(f"{MF32} {v(acc+16*nt,16)}, {v(BR+4*(m%8),4)}, {a(4*i,4)}, {c}")
        if m + DM < n: reads(m + DM)
        if m == 8: tA[15] = rot_loads(k, 15, vA)
        if m == 16:
            k(f"""s_lshl_b32 s79, {s(sWv)}, 13
            s_add_u32 s79, s79, {FTAB}
            s_add_u32 s80, s79, 4096""")
            for f in range(8):
                off = f" offset:{(f&3)*1024}" if f & 3 else ""
                k(f"buffer_load_dwordx4 {v(vF+4*f,4)}, {v(vL16)}, {WS}, {'s80' if f >= 4 else 's79'} offen{off} sc1")
            tF = k.vtok()
    stamp(k, 8)
    k("s_barrier")
    k(f"""v_mov_b32 v10, 0x00003f80
    v_mov_b32 v11, 0x3f800000""")
    for nn in range(32):
        k(f"v_dot2_f32_bf16 {v(acc+nn)}, {v(vRES+(nn>>1))}, {v(10+(nn&1))}, {v(acc+nn)}")
    vP = 48
    pack(k, vP, acc, 16)
    k(f"""v_and_b32 v10, 31, v0
    v_lshrrev_b32 v11, 5, v0
    v_lshlrev_b32 v11, 2, v11
    v_and_b32 v12, 7, v0
    v_xor_b32 v11, v11, v12
    v_lshlrev_b32 v11, 4, v11
    v_lshl_add_u32 v10, v10, 7, v11
    s_lshl_b32 s79, {s(sWv)}, 12
    v_add_u32 v10, s79, v10""")
    for i in range(4):
        k(f"v_xor_b32 v11, {16*i}, v10")
        k(f"ds_write_b128 v11, {v(vP+4*i,4)}")
    vS, vT_, vMu, vM2 = 64, 65, 66, 67
    k(f"v_add_f32 {v(vS)}, {v(acc)}, {v(acc+1)}")
    for i in range(2, 32): k(f"v_add_f32 {v(vS)}, {v(vS)}, {v(acc+i)}")
    xhalf_sum(k, vS, vT_)
    k(f"v_mul_f32 {v(vMu)}, 0x{f32(1/64):08x}, {v(vS)}")
    for i in range(32):
        k(f"v_sub_f32 {v(vT_)}, {v(acc+i)}, {v(vMu)}")
        if i == 0: k(f"v_mul_f32 {v(vM2)}, {v(vT_)}, {v(vT_)}")
        else: k(f"v_fmac_f32 {v(vM2)}, {v(vT_)}, {v(vT_)}")
    xhalf_sum(k, vM2, vT_)
    k(f"""v_mov_b32 v68, {s(sNonce)}
    v_mov_b32 v69, {s(sNonce)}
    v_and_b32 v10, 31, v0
    v_lshlrev_b32 v10, 4, v10
    s_lshl_b32 s79, {s(sWv)}, 9
    v_add_u32 v10, s79, v10
    s_lshl_b32 s79, {s(sR)}, 15
    s_lshl_b32 s84, {s(sL)}, 19
    s_add_u32 s84, s84, s79
    s_add_u32 s84, s84, {STX}
    s_lshl_b32 s79, {s(sG)}, 11
    s_add_u32 s79, s79, s84
    s_mov_b32 exec_hi, 0
    buffer_store_dwordx4 v[66:69], v10, {WS}, s79 offen sc1
    s_mov_b64 exec, -1""")
    k(f"""s_lshl_b32 s79, {s(sWv)}, 12
    v_add_u32 v11, s79, {v(vL16)}
    s_waitcnt lgkmcnt(0)""")
    for t in range(4): k(f"ds_read_b128 {v(72+4*t,4)}, v11 offset:{t*1024}")
    k(f"""v_lshrrev_b32 v11, 3, v0
    v_and_b32 v12, 7, v0
    v_xor_b32 v12, v12, v11
    v_lshlrev_b32 v12, 4, v12
    v_lshl_add_u32 v11, v11, 11, v12
    s_lshl_b32 s79, {s(sR)}, 2
    s_add_u32 s79, s79, {s(sWv)}
    s_lshl_b32 s79, s79, 16
    s_lshl_b32 s80, {s(sG)}, 7
    s_add_u32 s79, s79, s80
    s_lshl_b32 s80, {s(sL)}, 23
    s_add_u32 s79, s79, s80
    s_add_u32 s79, s79, {XP + 0x400000}
    s_waitcnt lgkmcnt(0)""")
    for t in range(4):
        k(f"buffer_store_dwordx4 {v(72+4*t,4)}, v11, {WS}, s79 offen sc1")
        if t < 3: k("s_add_u32 s79, s79, 16384")
    stamp(k, 9)
    Lp = k.label("stat")
    vG = 72
    k(f"""v_lshrrev_b32 v11, 5, v0
    v_lshl_add_u32 v10, v11, 14, v10
    s_add_u32 s85, s84, 4096
    s_add_u32 s86, s84, 8192
    s_add_u32 s87, s84, 12288""")
    k.raw(f"s_mov_b32 {s(sSpin)}, {SPIN_MAX}\n{Lp}:")
    for i in range(8):
        off = " offset:2048" if i & 1 else ""
        k.raw(f"buffer_load_dwordx4 {v(vG+4*i,4)}, v10, {WS}, s{84+(i>>1)} offen{off} sc1")
    k.raw("s_waitcnt vmcnt(0)")
    for i in range(8): k.raw(f"v_xor_b32 {v(vG+4*i+2)}, {s(sNonce)}, {v(vG+4*i+2)}")
    k.raw(f"""v_or3_b32 v11, {v(vG+2)}, {v(vG+6)}, {v(vG+10)}
    v_or3_b32 v12, {v(vG+14)}, {v(vG+18)}, {v(vG+22)}
    v_or3_b32 v11, v11, {v(vG+26)}, {v(vG+30)}
    v_or_b32 v11, v11, v12
    v_cmp_ne_u32 vcc, 0, v11
    s_cbranch_vccz {Lp}_done
    s_sub_u32 {s(sSpin)}, {s(sSpin)}, 1
    s_cmp_lg_u32 {s(sSpin)}, 0
    s_cbranch_scc1 {Lp}
    {Lp}_done:""")
    stamp(k, 10)
    vMean, vV, vD = 64, 65, 66
    k(f"v_add_f32 {v(vMean)}, {v(vG)}, {v(vG+4)}")
    for i in range(2, 8): k(f"v_add_f32 {v(vMean)}, {v(vMean)}, {v(vG+4*i)}")
    k(f"v_add_f32 {v(vV)}, {v(vG+1)}, {v(vG+5)}")
    for i in range(2, 8): k(f"v_add_f32 {v(vV)}, {v(vV)}, {v(vG+4*i+1)}")
    xhalf_sum(k, vMean, 67)
    k(f"v_mul_f32 {v(vMean)}, 0x{f32(1/16):08x}, {v(vMean)}\nv_mov_b32 {v(vD)}, 0")
    for i in range(8):
        k(f"""v_sub_f32 v67, {v(vG+4*i)}, {v(vMean)}
        v_fmac_f32 {v(vD)}, v67, v67""")
    k(f"v_fmac_f32 {v(vV)}, 0x{f32(64.0):08x}, {v(vD)}")
    xhalf_sum(k, vV, 67)
    k(f"""v_mov_b32 v67, 0x{f32(1e-5):08x}
    v_fmac_f32 v67, 0x{f32(1/1024):08x}, {v(vV)}
    v_rsq_f32 v68, v67
    s_nop 0
    v_mul_f32 v69, {v(vMean)}, v68""")
    for i in range(32): k(f"v_fma_f32 {v(acc+i)}, {v(acc+i)}, v68, -v69")
    pack(k, vP, acc, 16)
    HT = 16384
    k(f"""v_and_b32 v10, 31, v0
    v_bfe_u32 v11, v0, 1, 1
    v_bfe_u32 v12, v0, 3, 1
    v_lshl_add_u32 v11, v12, 1, v11
    v_lshlrev_b32 v11, 1, v11
    v_bfe_u32 v12, v0, 2, 1
    v_xor_b32 v11, v11, v12
    v_lshrrev_b32 v12, 5, v0
    v_lshlrev_b32 v12, 2, v12
    v_xor_b32 v11, v11, v12
    v_lshlrev_b32 v11, 4, v11
    v_lshl_add_u32 v10, v10, 7, v11
    s_lshl_b32 s79, {s(sWv)}, 12
    s_add_u32 s79, s79, {HT}
    v_add_u32 v10, s79, v10""")
    for i in range(4):
        k(f"v_xor_b32 v11, {16*i}, v10")
        k(f"ds_write_b128 v11, {v(vP+4*i,4)}")
    vTA = 224
    k(f"""v_lshrrev_b32 v10, 4, v0
    v_bfe_u32 v11, v0, 2, 2
    v_lshl_add_u32 v12, v10, 3, v11
    v_lshlrev_b32 v12, 7, v12
    v_lshrrev_b32 v11, 1, v11
    v_and_b32 v10, 1, v10
    v_lshl_add_u32 v11, v10, 1, v11
    v_lshlrev_b32 v11, 1, v11
    v_bfe_u32 v10, v0, 1, 1
    v_xor_b32 v11, v11, v10
    v_lshl_add_u32 v12, v11, 4, v12
    v_and_b32 v10, 1, v0
    v_lshl_add_u32 v12, v10, 3, v12
    v_add_u32 v12, {HT}, v12""")
    for d in range(4):
        k(f"v_xor_b32 {v(vTA+2*d)}, {32*d}, v12")
        k(f"v_xor_b32 {v(vTA+2*d+1)}, {32*d+16}, v12")
        k(f"v_add_u32 {v(vTA+2*d+1)}, 512, {v(vTA+2*d+1)}")
    k("s_waitcnt lgkmcnt(0)\ns_barrier")
    Z = 176
    frs = [(kap, d) for kap in range(4) for d in range(4)]
    tH = {}
    def hread(f):
        kap, d = frs[f]
        r = 48 + 4 * (f % 8)
        k(f"ds_read_b64_tr_b16 {v(r,2)}, {v(vTA+2*d)} offset:{kap*4096}")
        k(f"ds_read_b64_tr_b16 {v(r+2,2)}, {v(vTA+2*d+1)} offset:{kap*4096}")
        tH[f] = k.ltok()
    for f in range(6): hread(f)
    k.wait(vm=tF)
    for f in range(16):
        kap, d = frs[f]
        r = 48 + 4 * (f % 8)
        k.wait(lg=tH[f])
        for part in range(2):
            z = Z + 16 * part + 4 * d
            c = "0" if kap == 0 else v(z, 4)
            k(f"{MF16} {v(z,4)}, {v(r,4)}, {v(vF+16*part+4*kap,4)}, {c}")
        if f + 6 < 16: hread(f + 6)
    tT = {}
    def tread(f):
        k(f"ds_read_b128 {v(BR+4*(f%8),4)}, v10 offset:{f*1024}")
        tT[f] = k.ltok()
    k(f"v_add_u32 v10, 131072, {v(vL16)}")
    for f in range(6): tread(f)
    Zp, B2 = 208, 224
    pack(k, Zp, Z, 16)
    k(f"""s_cmp_eq_u32 {s(sWv)}, 0
    s_cselect_b32 s84, 0x00010001, 0
    s_mov_b32 s85, s84""")
    for i in range(8): k(f"v_cndmask_b32 {v(B2+i)}, {v(Zp+i)}, {v(Zp+8+i)}, s[84:85]")
    for i in range(8): k(f"v_cndmask_b32 {v(Zp+8+i)}, {v(Zp+8+i)}, 0, s[84:85]")
    k("s_mov_b32 s79, 0x80008000")
    for i in range(8): k(f"v_xor_b32 {v(B2+8+i)}, s79, {v(Zp+8+i)}")
    T1, T2 = 48, 80
    for f in range(32):
        mt, kp = f >> 2, f & 3
        k.wait(lg=tT[f])
        for T, B in ((T1, Zp), (T2, B2)):
            c = "0" if kp == 0 else v(T + 4 * mt, 4)
            k(f"{MF16} {v(T+4*mt,4)}, {v(BR+4*(f%8),4)}, {v(B+4*kp,4)}, {c}")
        if f + 6 < 32: tread(f + 6)
    k(f"""v_and_b32 v10, 15, v0
    s_lshl_b32 s79, {s(sWv)}, 4
    v_add_u32 v10, s79, v10
    v_sub_u32 v11, 128, v10
    v_cmp_eq_u32 vcc, 0, v10
    v_cndmask_b32 v11, v11, 64, vcc
    v_lshrrev_b32 v12, 4, v0
    v_lshlrev_b32 v12, 4, v12
    v_lshl_add_u32 v10, v10, 16, v12
    v_lshl_add_u32 v11, v11, 16, v12
    s_lshl_b32 s79, {s(sR)}, 12
    s_lshl_b32 s80, {s(sG)}, 8
    s_add_u32 s79, s79, s80
    s_lshl_b32 s80, {s(sL)}, 23
    s_add_u32 s79, s79, s80
    s_add_u32 s79, s79, {TB}""")
    pack(k, 144, T1, 16)
    pack(k, 160, T2, 16)
    for i in range(4):
        k(f"buffer_store_dwordx4 {v(144+4*i,4)}, v10, {WS}, s79 offen offset:{64*i} sc1")
        k(f"buffer_store_dwordx4 {v(160+4*i,4)}, v11, {WS}, s79 offen offset:{64*i} sc1")
    stamp(k, 11)

def grid_barrier(k):
    L = k.label("gb")
    k("s_waitcnt vmcnt(0)\ns_barrier")
    k.raw(f"""s_cmp_lg_u32 {s(sWv)}, 0
    s_cbranch_scc1 {L}_w
    s_lshl_b32 s80, {s(sL)}, 10
    s_add_u32 s80, s80, {CNT}
    s_and_b32 s79, s2, 7
    s_lshl_b32 s79, s79, 7
    v_mov_b32 v10, s79
    v_mov_b32 v11, 1
    s_mov_b64 exec, 1
    buffer_atomic_add v11, v10, {WS}, s80 offen sc1
    s_mov_b64 exec, -1
    {L}_w:""")

def grid_wait(k):
    L = k.label("gw")
    k.raw(f"""s_cmp_lg_u32 {s(sWv)}, 0
    s_cbranch_scc1 {L}_done
    v_min_u32 v10, 7, v0
    v_lshlrev_b32 v10, 7, v10
    s_mov_b32 {s(sSpin)}, {SPIN_MAX}
    {L}:
    buffer_load_dword v11, v10, {WS}, s80 offen sc1
    s_waitcnt vmcnt(0)
    v_cmp_ne_u32 vcc, 32, v11
    s_cbranch_vccz {L}_done
    s_sub_u32 {s(sSpin)}, {s(sSpin)}, 1
    s_cmp_lg_u32 {s(sSpin)}, 0
    s_cbranch_scc1 {L}
    {L}_done:
    s_barrier""")

def p3(k, cfg):
    grid_barrier(k)
    vC, vGm = 144, 240
    k(f"s_mov_b32 s81, {CTAB}")
    for f in range(16):
        off = f" offset:{(f&3)*1024}" if f & 3 else ""
        k(f"buffer_load_dwordx4 {v(vC+4*f,4)}, {v(vL16)}, {WS}, s81 offen{off} sc1")
        if f & 3 == 3 and f < 15: k("s_add_u32 s81, s81, 4096")
    tC = k.vtok()
    k(f"""s_lshr_b32 s79, {s(sG)}, 1
    s_lshl_b32 s79, s79, 4
    s_add_u32 s83, s79, {s(sR)}
    s_and_b32 s79, {s(sG)}, 1
    s_lshl_b32 s79, s79, 10
    s_add_u32 s79, s79, s83
    v_bfe_u32 v16, v0, 2, 2
    v_bfe_u32 v17, v0, 1, 1
    v_lshl_add_u32 v16, v17, 2, v16
    v_lshlrev_b32 v16, 7, v16
    v_add_u32 v16, s79, v16
    v_lshrrev_b32 v17, 4, v0
    v_lshlrev_b32 v17, 1, v17
    v_and_b32 v18, 1, v0
    v_cmp_eq_u32 s[84:85], 1, v18
    s_mov_b32 s79, 0x{f32(1/2048):08x}""")
    for i in range(4):
        c = (i & 1) + 8 * (i >> 1)
        k(f"""v_add_u32 {v(20+i)}, {c}, v17
        v_mul_u32_u24 {v(20+i)}, {v(20+i)}, v16
        v_and_b32 {v(20+i)}, 2047, {v(20+i)}
        v_cvt_f32_u32 {v(20+i)}, {v(20+i)}
        v_mul_f32 {v(20+i)}, s79, {v(20+i)}""")
    for i in range(4):
        k(f"v_cos_f32 {v(24+i)}, {v(20+i)}\nv_sin_f32 {v(28+i)}, {v(20+i)}")
    for i in range(4):
        k(f"""v_sub_f32 {v(32+i)}, 0, {v(28+i)}
        v_cndmask_b32 {v(36+i)}, {v(24+i)}, {v(32+i)}, s[84:85]
        v_cndmask_b32 {v(40+i)}, {v(28+i)}, {v(24+i)}, s[84:85]
        v_cvt_pk_bf16_f32 {v(vGm+i)}, {v(36+i)}, {v(40+i)}""")
    grid_wait(k)
    stamp(k, 12)
    k(f"""s_lshl_b32 s79, s83, 16
    s_lshl_b32 s80, {s(sL)}, 23
    s_add_u32 s79, s79, s80
    s_add_u32 s79, s79, {TB}
    s_lshl_b32 s80, {s(sWv)}, 14
    s_add_u32 s79, s79, s80
    s_mul_i32 s81, {s(sWv)}, {4*4128}""")
    for b in range(4):
        k(f"s_add_u32 m0, s81, {b*4128}")
        for i in range(4):
            off = f" offset:{i*1024}" if i else ""
            k(f"buffer_load_dwordx4 {v(vL16)}, {WS}, s79 offen{off} sc1 lds")
        if b < 3: k("s_add_u32 s79, s79, 4096")
    tT = k.vtok()
    vR = 112
    k(f"""v_lshrrev_b32 v10, 4, v0
    v_lshlrev_b32 v10, 11, v10
    v_and_b32 v11, 15, v0
    v_lshl_add_u32 v10, v11, 7, v10
    s_lshl_b32 s79, {s(sWv)}, 5
    v_add_u32 v10, s79, v10
    s_lshl_b32 s79, {s(sR)}, 7
    s_lshl_b32 s80, {s(sG)}, 3
    s_add_u32 s79, s79, s80
    s_lshl_b32 s79, s79, 11
    s_lshl_b32 s80, {s(sL)}, 23
    s_add_u32 s79, s79, s80
    s_add_u32 s79, s79, {XP + 0x400000}
    s_add_u32 s80, s79, 8192""")
    for aa in range(2):
        for h in range(2):
            off = " offset:16" if h else ""
            k(f"buffer_load_dwordx4 {v(vR+8*aa+4*h,4)}, v10, {WS}, s{79+aa} offen{off} sc1")
    tRes = k.vtok()
    k(f"""v_lshrrev_b32 v10, 4, v0
    v_lshlrev_b32 v10, 1, v10
    v_bfe_u32 v11, v0, 3, 1
    v_add_u32 v10, v10, v11
    v_mul_u32_u24 v10, 4128, v10
    v_bfe_u32 v11, v0, 2, 1
    v_lshl_add_u32 v10, v11, 7, v10
    v_and_b32 v11, 3, v0
    v_lshl_add_u32 v10, v11, 3, v10
    s_lshl_b32 s79, {s(sWv)}, 5
    v_add_u32 v10, s79, v10""")
    k.wait(vm=tT)
    k("s_barrier")
    U = 208
    tB = {}
    def bread(d):
        r = 48 + 4 * (d % 8)
        k(f"ds_read_b64_tr_b16 {v(r,2)}, v10 offset:{d*256}")
        k(f"ds_read_b64_tr_b16 {v(r+2,2)}, v10 offset:{d*256+33024}")
        tB[d] = k.ltok()
    for d in range(6): bread(d)
    D1 = 80
    for d in range(16):
        k.wait(lg=tB[d])
        k(f"{MF16} {v(D1+4*(d%8),4)}, {v(vGm,4)}, {v(48+4*(d%8),4)}, 0")
        if d + 6 < 16: bread(d + 6)
        if d >= 3:
            e = d - 3
            for aa in range(2):
                k(f"v_cvt_pk_bf16_f32 {v(U+16*aa+e)}, {v(D1+4*(e%8)+2*aa)}, {v(D1+4*(e%8)+2*aa+1)}")
    for e in range(13, 16):
        for aa in range(2):
            k(f"v_cvt_pk_bf16_f32 {v(U+16*aa+e)}, {v(D1+4*(e%8)+2*aa)}, {v(D1+4*(e%8)+2*aa+1)}")
    k.wait(vm=tC)
    Y = 16
    for m in range(4):
        for aa in range(2):
            for st in range(4):
                y = Y + 16 * aa + 4 * st
                c = "0" if m == 0 else v(y, 4)
                k(f"{MF16} {v(y,4)}, {v(vC+16*st+4*m,4)}, {v(U+16*aa+4*m,4)}, {c}")
    k.wait(vm=tRes)
    k(f"""v_mov_b32 v10, 0x00003f80
    v_mov_b32 v11, 0x3f800000""")
    for aa in range(2):
        for e in range(16):
            k(f"v_dot2_f32_bf16 {v(Y+16*aa+e)}, {v(vR+8*aa+(e>>1))}, {v(10+(e&1))}, {v(Y+16*aa+e)}")
    stamp(k, 13)
    STG, STAT = 66048, 82688
    Lf, Le = k.label("fin"), k.label("p3end")
    k(f"s_cmp_eq_u32 {s(sL)}, 1\ns_cbranch_scc1 {Lf}")
    k(f"s_mov_b32 s66, {XP + 0x800000}\ns_mov_b32 s67, {HB + 0x400000}")
    save = (k.vm, k.lg)
    ln_tail(k, "mid", Y, STG, STAT, 66, 67)
    k(f"""s_waitcnt vmcnt(0)
    s_barrier
    s_lshl_b32 s79, {s(sR)}, 7
    s_lshl_b32 s80, {s(sG)}, 2
    s_add_u32 s80, s80, s79
    s_add_u32 s80, s80, {FL_S5}""")
    signal(k, 80)
    k(f"s_branch {Le}\n{Lf}:")
    ln_tail(k, "final", Y, STG, STAT, 66, 67)
    k(f"{Le}:")
    stamp(k, 14)
```

```python
import sys
sys.path.insert(0, "gen")
from asm import K, v, a, s
from layout import *

NAME = "interleave_layers__linear_attn_block__spectral_fnet__prompt_kernel"
CFG = dict(stop=None, stamps=False)

SRD_WS, SRD_W, SRD_X, SRD_WO, SRD_OUT, SRD_DBG = 4, 8, 12, 16, 20, 24
sR, sG, sWv, sNonce, sL, sSt0 = 28, 29, 30, 31, 32, 33
sA0, sWf0 = 34, 50
sT = 66
sSpin = 95
WS, WQ, XS, WOS, OUTS, DBGS = (s(x, 4) for x in (SRD_WS, SRD_W, SRD_X, SRD_WO, SRD_OUT, SRD_DBG))
vLane, vL16 = 0, 1
vW, vWq, vTr, vTrH = 2, 4, 6, 8
vStamp = 255
RING_SLOT = 16384
NRING = 7
SCR = NRING * RING_SLOT
P0_X = SCR
P0_WO = SCR + 16640
P0_STG = 5 * RING_SLOT
P0_ST = 6 * RING_SLOT
LDS_BYTES = 163840
SPIN_MAX = 1 << 17

def stamp(k, idx):
    if not CFG["stamps"]: return
    k.raw(f"""s_memrealtime s[96:97]
    s_waitcnt lgkmcnt(0)
    v_writelane_b32 {v(vStamp)}, s96, {idx}""")

def srd(k, dst, lo, size):
    k(f"""s_mov_b32 {s(dst)}, {s(lo)}
    s_mov_b32 {s(dst+1)}, {s(lo+1)}
    s_mov_b32 {s(dst+2)}, {size}
    s_mov_b32 {s(dst+3)}, 0x00020000""")

def entry(k):
    k(f"""s_cmp_ge_u32 s2, 256
    s_cbranch_scc1 L_END
    s_load_dwordx2 s[66:67], s[0:1], 0
    s_load_dwordx2 s[68:69], s[0:1], 8
    s_load_dwordx2 s[70:71], s[0:1], 16
    s_load_dwordx4 s[72:75], s[0:1], 64
    s_load_dwordx2 s[76:77], s[0:1], 80
    v_lshrrev_b32 v1, 6, v0
    v_and_b32 v0, 63, v0
    v_readfirstlane_b32 {s(sWv)}, v1
    s_and_b32 s78, s2, 7
    s_lshr_b32 s79, s78, 1
    s_lshl_b32 s79, s79, 2
    s_lshr_b32 s80, s2, 6
    s_add_u32 {s(sR)}, s79, s80
    s_and_b32 s79, s2, 1
    s_lshl_b32 s79, s79, 3
    s_lshr_b32 s80, s2, 3
    s_and_b32 s80, s80, 7
    s_add_u32 {s(sG)}, s79, s80
    s_lshl_b32 s79, {s(sG)}, 1
    s_lshl_b32 s80, {s(sR)}, 2
    s_add_u32 s79, s79, s80
    s_and_b32 {s(sSt0)}, s79, 15
    s_mov_b32 {s(sL)}, 0
    s_mov_b32 {s(sNonce)}, 0""")
    for j in range(16):
        k(f"""s_add_u32 s79, {s(sSt0)}, {j}
        s_and_b32 s79, s79, 15
        s_lshl_b32 {s(sA0+j)}, s79, 12
        s_mul_i32 {s(sWf0+j)}, s79, 6144""")
    k(f"v_lshlrev_b32 {v(vL16)}, 4, {v(vLane)}")
    if CFG["stamps"]: k(f"v_mov_b32 {v(vStamp)}, 0")
    k("s_waitcnt lgkmcnt(0)")
    srd(k, SRD_X, 66, 4194304)
    srd(k, SRD_W, 68, 6291456)
    srd(k, SRD_WO, 70, 2097152)
    srd(k, SRD_OUT, 72, 4194304)
    srd(k, SRD_DBG, 74, 256)
    srd(k, SRD_WS, 76, WS_SIZE)
    stamp(k, 0)
    k(f"""v_lshrrev_b32 v10, 3, v0
    v_lshrrev_b32 v11, 1, v10
    v_and_b32 v11, 1, v11
    v_bfe_u32 v12, v0, 2, 1
    v_xor_b32 v11, v11, v12
    v_lshlrev_b32 v11, 6, v11
    v_and_b32 v12, 3, v0
    v_lshlrev_b32 v12, 4, v12
    v_add_u32 v11, v11, v12
    s_mov_b32 s79, {64*6144}
    v_mul_lo_u32 v10, s79, v10
    v_add_u32 v10, v10, v11
    s_mul_i32 s79, {s(sWv)}, {16*6144}
    s_lshl_b32 s80, {s(sG)}, 7
    s_add_u32 s79, s79, s80
    v_add_u32 {v(vWq)}, s79, v10
    v_add_u32 {v(vWq+1)}, {512*6144}, {v(vWq)}
    v_add_u32 {v(vW)}, 2048, {v(vWq)}
    v_add_u32 {v(vW+1)}, 2048, {v(vWq+1)}""")
    k(f"""v_lshrrev_b32 v10, 5, v0
    v_lshlrev_b32 v10, 10, v10
    v_bfe_u32 v11, v0, 2, 2
    v_lshlrev_b32 v12, 7, v11
    v_add_u32 v10, v10, v12
    v_bfe_u32 v12, v0, 4, 1
    v_lshlrev_b32 v12, 5, v12
    v_add_u32 v10, v10, v12
    v_and_b32 v12, 3, v0
    v_lshlrev_b32 v12, 3, v12
    v_add_u32 v10, v10, v12
    v_lshrrev_b32 v11, 1, v11
    v_lshlrev_b32 v11, 6, v11
    v_add_u32 {v(vTr)}, v10, v11
    v_xor_b32 {v(vTr+1)}, 64, {v(vTr)}
    v_add_u32 {v(vTrH)}, 0x10000, {v(vTr)}
    v_add_u32 {v(vTrH+1)}, 0x10000, {v(vTr+1)}""")

def w_dma(k, j):
    slot = (j % NRING) * RING_SLOT
    if j < 16:
        for hb in range(2):
            k(f"""s_lshl_b32 s79, {s(sWv)}, 12
            s_add_u32 m0, s79, {slot + hb*1024}
            buffer_load_dwordx4 {v(vW+hb)}, {WQ}, {s(sWf0+j)} offen lds
            buffer_load_dwordx4 {v(vW+hb)}, {WQ}, {s(sWf0+j)} offen offset:2048 lds""")
    else:
        for sh in range(2):
            for hb in range(2):
                k(f"""s_lshl_b32 s79, {s(sWv)}, 11
                s_add_u32 m0, s79, {slot + sh*8192 + hb*1024}
                buffer_load_dwordx4 {v(vWq+hb)}, {WQ}, {s(sWf0 + 2*(j-16) + sh)} offen lds""")
    return k.vtok()

def cos_table_block(k, vB, vM, vAdd, cj, addj, mask, scale, vout, vt, lanemask=None):
    k(f"s_mov_b32 s79, 0x{scale:08x}")
    for j in range(8):
        t = vt + j
        k(f"v_add_u32 {v(t)}, {cj[j]}, {v(vB)}")
        k(f"v_mad_u32_u24 {v(t)}, {v(t)}, {v(vM)}, {v(vAdd)}")
        if addj[j]: k(f"v_add_u32 {v(t)}, {addj[j]}, {v(t)}")
        k(f"""v_and_b32 {v(t)}, {mask}, {v(t)}
        v_cvt_f32_u32 {v(t)}, {v(t)}
        v_mul_f32 {v(t)}, s79, {v(t)}""")
    for j in range(8): k(f"v_cos_f32 {v(vt+j)}, {v(vt+j)}")
    if lanemask is not None:
        for j in range(8): k(f"v_cndmask_b32 {v(vt+j)}, 0, {v(vt+j)}, {lanemask}")
    for i in range(4): k(f"v_cvt_pk_bf16_f32 {v(vout+i)}, {v(vt+2*i)}, {v(vt+2*i+1)}")

import struct
def f32(x): return struct.unpack("<I", struct.pack("<f", x))[0]

def tables(k):
    Lf, Lc, Ld = k.label("ftab"), k.label("ctab"), k.label("tabdone")
    vB, vM, vAdd, vo, vt, vad = 100, 101, 102, 104, 108, 103
    k(f"""s_cmp_ge_u32 {s(sWv)}, 2
    s_cbranch_scc1 {Lf}""")
    k.raw(f"""s_lshl_b32 s80, {s(sR)}, 1
    s_add_u32 s80, s80, {s(sWv)}
    s_lshr_b32 s81, s80, 2
    s_and_b32 s82, s80, 3
    s_lshr_b32 s83, s81, 1
    s_and_b32 s83, s83, 1
    s_lshl_b32 s83, s83, 5
    s_and_b32 s84, s81, 1
    s_lshl_b32 s84, s84, 2
    s_add_u32 s83, s83, s84
    s_lshr_b32 s84, s81, 2
    s_lshr_b32 s85, s82, 1
    s_sub_u32 s86, s84, s85
    s_lshl_b32 s86, s86, 8
    s_and_b32 s86, s86, 1023
    s_and_b32 s87, s82, 1
    s_lshl_b32 s87, s87, 5
    s_add_u32 s87, s87, {s(sG)}
    v_bfe_u32 v103, v0, 2, 2
    v_lshlrev_b32 v103, 3, v103
    v_and_b32 v104, 3, v0
    v_add_u32 v103, v103, v104
    v_add_u32 {v(vM)}, s83, v103
    v_lshrrev_b32 v103, 4, v0
    v_lshlrev_b32 v103, 8, v103
    v_add_u32 {v(vB)}, s87, v103
    v_mov_b32 {v(vAdd)}, s86""")
    cj = [16 * (j >> 2) + 64 * (j & 3) for j in range(8)]
    save = (k.vm, k.lg)
    cos_table_block(k, vB, vM, vAdd, cj, [0] * 8, 1023, f32(1 / 1024), vo, vt)
    k.raw(f"""s_lshl_b32 s81, {s(sG)}, 15
    s_lshl_b32 s80, s80, 10
    s_add_u32 s80, s80, s81
    s_add_u32 s80, s80, {HTAB}
    buffer_store_dwordx4 {v(vo,4)}, {v(vL16)}, {WS}, s80 offen sc1
    s_branch {Ld}
    {Lf}:
    s_cmp_eq_u32 {s(sWv)}, 3
    s_cbranch_scc1 {Lc}
    s_cmp_ge_u32 s2, 32
    s_cbranch_scc1 {Ld}
    s_lshr_b32 s80, s2, 3
    s_lshl_b32 s80, s80, 4
    s_bfe_u32 s81, s2, 0x10002
    s_and_b32 s82, s2, 3
    s_lshl_b32 s82, s82, 1
    v_and_b32 v103, 15, v0
    v_add_u32 v103, s80, v103
    s_lshl_b32 s83, s81, 6
    s_lshl_b32 s84, s81, 5
    v_cmp_eq_u32 vcc, 0, v103
    v_mov_b32 v104, s83
    v_cndmask_b32 {v(vM)}, v103, v104, vcc
    v_mov_b32 v104, s84
    v_cndmask_b32 {v(vAdd)}, v104, 0, vcc
    v_lshrrev_b32 v103, 5, v0
    v_bfe_u32 v104, v0, 4, 1
    v_lshlrev_b32 v104, 6, v104
    v_add_u32 v103, v103, v104
    v_add_u32 {v(vB)}, s82, v103""")
    cos_table_block(k, vB, vM, vAdd, [8 * j for j in range(8)], [0] * 8, 127, f32(1 / 128), vo, vt)
    k.raw(f"""s_lshl_b32 s80, s2, 10
    s_add_u32 s80, s80, {FTAB}
    buffer_store_dwordx4 {v(vo,4)}, {v(vL16)}, {WS}, s80 offen sc1
    s_branch {Ld}
    {Lc}:
    s_cmp_ge_u32 s2, 16
    s_cbranch_scc1 {Ld}
    s_lshr_b32 s80, s2, 2
    s_lshl_b32 s80, s80, 2
    s_and_b32 s81, s2, 3
    s_lshl_b32 s81, s81, 2
    v_and_b32 v103, 3, v0
    v_add_u32 {v(vM)}, s80, v103
    v_mov_b32 {v(vB)}, s81
    v_mov_b32 {v(vAdd)}, 0
    v_lshrrev_b32 v103, 4, v0
    v_bfe_u32 v104, v0, 2, 2
    v_cmp_eq_u32 s[82:83], v103, v104""")
    cos_table_block(k, vB, vM, vAdd, [j >> 1 for j in range(8)], [12 * (j & 1) for j in range(8)], 15, f32(1 / 16), vo, vt,
                    lanemask="s[82:83]")
    k.raw(f"""s_lshl_b32 s80, s2, 10
    s_add_u32 s80, s80, {CTAB}
    buffer_store_dwordx4 {v(vo,4)}, {v(vL16)}, {WS}, s80 offen sc1
    {Ld}:""")
    k.vm, k.lg = save

def ln_tail(k, mode, vX, stg, stat, sXP, sH):
    vP, vA, vB2, vS, vU, vQ = 48, 64, 65, 66, 70, 74
    if mode == "final":
        for i in range(16):
            k(f"v_cvt_pk_bf16_f32 {v(vP+i)}, {v(vX+2*i)}, {v(vX+2*i+1)}")
        k(f"""v_lshrrev_b32 {v(vA)}, 4, v0
        v_mul_u32_u24 {v(vA)}, 2080, {v(vA)}
        v_and_b32 {v(vB2)}, 15, v0
        v_lshlrev_b32 {v(vB2)}, 1, {v(vB2)}
        v_add_u32 {v(vA)}, {v(vA)}, {v(vB2)}
        s_lshl_b32 s79, {s(sWv)}, 5
        s_add_u32 s79, s79, {stg}
        v_add_u32 {v(vA)}, s79, {v(vA)}""")
        for aa in range(2):
            for i in range(8):
                off = aa * 4 * 2080 + (2 * i) * 128
                k(f"ds_write_b16 {v(vA)}, {v(vP+8*aa+i)} offset:{off}")
                k(f"ds_write_b16_d16_hi {v(vA)}, {v(vP+8*aa+i)} offset:{off+128}")
                if i % 4 == 3: k("s_waitcnt lgkmcnt(0)")
        k("s_waitcnt lgkmcnt(0)\ns_barrier")
        k(f"""s_mul_i32 s79, {s(sWv)}, {2*2080}
        s_add_u32 s79, s79, {stg}
        v_add_u32 {v(vA)}, s79, {v(vL16)}""")
        for i, off in enumerate((0, 1024, 2080, 3104)):
            k(f"ds_read_b128 {v(vP+4*i,4)}, {v(vA)} offset:{off}")
        k(f"""s_lshr_b32 s79, {s(sG)}, 1
        s_lshl_b32 s79, s79, 4
        s_add_u32 s79, s79, {s(sR)}
        s_and_b32 s80, {s(sG)}, 1
        s_lshl_b32 s80, s80, 10
        s_add_u32 s79, s79, s80
        s_lshl_b32 s80, {s(sWv)}, 8
        s_add_u32 s79, s79, s80
        s_lshl_b32 s79, s79, 11
        s_add_u32 s80, s79, {128*2048}
        s_waitcnt lgkmcnt(0)
        buffer_store_dwordx4 {v(vP,4)}, {v(vL16)}, {OUTS}, s79 offen
        buffer_store_dwordx4 {v(vP+4,4)}, {v(vL16)}, {OUTS}, s79 offen offset:1024
        buffer_store_dwordx4 {v(vP+8,4)}, {v(vL16)}, {OUTS}, s80 offen
        buffer_store_dwordx4 {v(vP+12,4)}, {v(vL16)}, {OUTS}, s80 offen offset:1024""")
        return
    for i in range(16):
        k(f"v_cvt_pk_bf16_f32 {v(vP+i)}, {v(vX+2*i)}, {v(vX+2*i+1)}")
    k(f"""v_and_b32 {v(vA)}, 15, v0
    v_and_b32 {v(vB2)}, 7, v0
    s_lshl_b32 s79, {s(sWv)}, 1
    v_xor_b32 {v(vB2)}, s79, {v(vB2)}
    v_lshl_add_u32 {v(vA)}, {v(vA)}, 3, {v(vB2)}
    v_lshlrev_b32 {v(vA)}, 4, {v(vA)}
    v_lshrrev_b32 {v(vB2)}, 4, v0
    v_lshl_add_u32 {v(vA)}, {v(vB2)}, 11, {v(vA)}
    v_add_u32 {v(vA)}, {stg}, {v(vA)}
    v_xor_b32 {v(vB2)}, 16, {v(vA)}""")
    for aa in range(2):
        k(f"ds_write_b128 {v(vA)}, {v(vP+8*aa,4)} offset:{aa*8192}")
        k(f"ds_write_b128 {v(vB2)}, {v(vP+8*aa+4,4)} offset:{aa*8192}")
    for aa in range(2):
        x = vX + 16 * aa
        k(f"v_add_f32 {v(vS+aa)}, {v(x)}, {v(x+1)}")
        for i in range(2, 16): k(f"v_add_f32 {v(vS+aa)}, {v(vS+aa)}, {v(x+i)}")
    def rowsum2(r0, t0):
        cur, nxt = r0, t0
        for sh in (8, 4, 2, 1):
            for aa in range(2):
                k(f"v_add_f32_dpp {v(nxt+aa)}, {v(cur+aa)}, {v(cur+aa)} row_ror:{sh} row_mask:0xf bank_mask:0xf")
            cur, nxt = nxt, cur
        return cur
    m = rowsum2(vS, vU)
    for aa in range(2): k(f"v_mul_f32 {v(vQ+2*aa)}, 0x{f32(1/256):08x}, {v(m+aa)}")
    for aa in range(2):
        x = vX + 16 * aa
        for i in range(16):
            k(f"v_sub_f32 {v(vU+2)}, {v(x+i)}, {v(vQ+2*aa)}")
            if i == 0: k(f"v_mul_f32 {v(vS+aa)}, {v(vU+2)}, {v(vU+2)}")
            else: k(f"v_fmac_f32 {v(vS+aa)}, {v(vU+2)}, {v(vU+2)}")
    m = rowsum2(vS, vU)
    for aa in range(2): k(f"v_mov_b32 {v(vQ+2*aa+1)}, {v(m+aa)}")
    k(f"""v_lshrrev_b32 {v(vU)}, 4, v0
    v_lshlrev_b32 {v(vU)}, 5, {v(vU)}
    s_lshl_b32 s79, {s(sWv)}, 3
    s_add_u32 s79, s79, {stat}
    v_add_u32 {v(vU+1)}, s79, {v(vU)}
    s_mov_b32 exec_lo, 0x00010001
    s_mov_b32 exec_hi, 0x00010001
    ds_write_b64 {v(vU+1)}, {v(vQ,2)}
    ds_write_b64 {v(vU+1)}, {v(vQ+2,2)} offset:128
    s_mov_b64 exec, -1
    v_add_u32 {v(vU)}, {stat}, {v(vU)}
    s_waitcnt lgkmcnt(0)
    s_barrier""")
    vR = 80
    for aa in range(2):
        k(f"ds_read_b128 {v(vR+8*aa,4)}, {v(vU)} offset:{aa*128}")
        k(f"ds_read_b128 {v(vR+8*aa+4,4)}, {v(vU)} offset:{aa*128+16}")
    vRB = 96
    k(f"""s_lshl_b32 s79, {s(sWv)}, 12
    s_add_u32 s79, s79, {stg}
    v_add_u32 {v(vA)}, s79, {v(vL16)}""")
    for i in range(4): k(f"ds_read_b128 {v(vRB+4*i,4)}, {v(vA)} offset:{i*1024}")
    k(f"""v_lshrrev_b32 {v(vB2)}, 3, v0
    v_xor_b32 {v(vB2)}, {v(vB2)}, v0
    v_and_b32 {v(vB2)}, 7, {v(vB2)}
    v_and_b32 {v(vA)}, 56, v0
    v_or_b32 {v(vB2)}, {v(vB2)}, {v(vA)}
    v_lshlrev_b32 {v(vB2)}, 4, {v(vB2)}
    s_lshl_b32 s79, {s(sR)}, 7
    s_lshl_b32 s80, {s(sG)}, 3
    s_add_u32 s79, s79, s80
    s_lshl_b32 s80, {s(sWv)}, 1
    s_add_u32 s79, s79, s80
    s_lshl_b32 s79, s79, 11
    s_add_u32 s79, s79, {s(sXP)}
    s_waitcnt lgkmcnt(0)""")
    for i in range(4):
        k(f"buffer_store_dwordx4 {v(vRB+4*i,4)}, {v(vB2)}, {WS}, s79 offen offset:{i*1024} sc1")
    vM_, vRs = 112, 114
    for aa in range(2):
        b = vR + 8 * aa
        k(f"""v_add_f32 {v(vU)}, {v(b)}, {v(b+2)}
        v_add_f32 {v(vU+1)}, {v(b+4)}, {v(b+6)}
        v_add_f32 {v(vU)}, {v(vU)}, {v(vU+1)}
        v_mul_f32 {v(vM_+aa)}, 0.25, {v(vU)}
        v_add_f32 {v(vU)}, {v(b+1)}, {v(b+3)}
        v_add_f32 {v(vU+1)}, {v(b+5)}, {v(b+7)}
        v_add_f32 {v(vU)}, {v(vU)}, {v(vU+1)}
        v_mov_b32 {v(vU+1)}, 0""")
        for i in range(4):
            k(f"""v_sub_f32 {v(vU+2)}, {v(b+2*i)}, {v(vM_+aa)}
            v_fmac_f32 {v(vU+1)}, {v(vU+2)}, {v(vU+2)}""")
        k(f"""v_fmac_f32 {v(vU)}, 0x{f32(256.0):08x}, {v(vU+1)}
        v_mov_b32 {v(vU+1)}, 0x{f32(1e-5):08x}
        v_fmac_f32 {v(vU+1)}, 0x{f32(1/1024):08x}, {v(vU)}
        v_rsq_f32 {v(vRs+aa)}, {v(vU+1)}""")
    for aa in range(2):
        k(f"v_mul_f32 {v(vU+aa)}, {v(vM_+aa)}, {v(vRs+aa)}")
    for aa in range(2):
        x = vX + 16 * aa
        for i in range(16):
            k(f"v_fma_f32 {v(x+i)}, {v(x+i)}, {v(vRs+aa)}, -{v(vU+aa)}")
    for i in range(16):
        k(f"v_cvt_pk_bf16_f32 {v(vP+i)}, {v(vX+2*i)}, {v(vX+2*i+1)}")
    k(f"""v_and_b32 {v(vA)}, 15, v0
    v_lshlrev_b32 {v(vA)}, 12, {v(vA)}
    v_lshrrev_b32 {v(vB2)}, 4, v0
    v_lshl_add_u32 {v(vA)}, {v(vB2)}, 4, {v(vA)}
    s_lshl_b32 s79, {s(sWv)}, 10
    v_add_u32 {v(vA)}, s79, {v(vA)}
    s_lshl_b32 s79, {s(sR)}, 2
    s_lshr_b32 s80, {s(sG)}, 2
    s_add_u32 s79, s79, s80
    s_lshl_b32 s79, s79, 16
    s_and_b32 s80, {s(sG)}, 3
    s_lshl_b32 s80, s80, 7
    s_add_u32 s79, s79, s80
    s_add_u32 s79, s79, {s(sH)}""")
    for aa in range(2):
        for hb in range(2):
            k(f"buffer_store_dwordx4 {v(vP+8*aa+4*hb,4)}, {v(vA)}, {WS}, s79 offen offset:{hb*512+aa*64} sc1")

def signal(k, soff):
    L = k.label("sig")
    k.raw(f"""s_cmp_lg_u32 {s(sWv)}, 0
    s_cbranch_scc1 {L}
    v_mov_b32 v10, {s(sNonce)}
    v_mov_b32 v11, 0
    s_mov_b64 exec, 1
    buffer_store_dword v10, v11, {WS}, {s(soff)} offen sc1
    s_mov_b64 exec, -1
    {L}:""")

def poll16(k, soff):
    L = k.label("poll")
    k.raw(f"""s_cmp_lg_u32 {s(sWv)}, 0
    s_cbranch_scc1 {L}_done
    v_and_b32 v10, 15, v0
    v_lshlrev_b32 v10, 2, v10
    s_mov_b32 {s(sSpin)}, {SPIN_MAX}
    {L}:
    buffer_load_dword v11, v10, {WS}, {s(soff)} offen sc1
    s_waitcnt vmcnt(0)
    v_cmp_ne_u32 vcc, {s(sNonce)}, v11
    s_cbranch_vccz {L}_done
    s_sub_u32 {s(sSpin)}, {s(sSpin)}, 1
    s_cmp_lg_u32 {s(sSpin)}, 0
    s_cbranch_scc1 {L}
    {L}_done:
    s_barrier""")

def p0(k):
    Ln = k.label("nonce")
    k.raw(f"""v_mov_b32 v14, 0
    s_or_b32 s79, s2, {s(sWv)}
    s_cmp_lg_u32 s79, 0
    s_cbranch_scc1 {Ln}_a
    buffer_load_dword v15, v14, {WS}, 0 offen sc1
    {Ln}_a:""")
    k(f"""s_lshr_b32 s79, {s(sG)}, 1
    s_lshl_b32 s79, s79, 4
    s_add_u32 s79, s79, {s(sR)}
    s_and_b32 s80, {s(sG)}, 1
    s_lshl_b32 s80, s80, 10
    s_add_u32 s79, s79, s80
    s_lshl_b32 s80, {s(sWv)}, 8
    s_add_u32 s79, s79, s80
    s_lshl_b32 s79, s79, 11
    s_add_u32 s80, s79, {128*2048}
    s_mul_i32 s81, {s(sWv)}, {2*2080}
    s_add_u32 m0, s81, {P0_X}
    buffer_load_dwordx4 {v(vL16)}, {XS}, s79 offen lds
    buffer_load_dwordx4 {v(vL16)}, {XS}, s79 offen offset:1024 lds
    s_add_u32 m0, s81, {P0_X + 2080}
    buffer_load_dwordx4 {v(vL16)}, {XS}, s80 offen lds
    buffer_load_dwordx4 {v(vL16)}, {XS}, s80 offen offset:1024 lds""")
    tx = k.vtok()
    k(f"""s_lshr_b32 s79, s2, 2
    s_lshl_b32 s79, s79, 4
    s_bfe_u32 s80, s2, 0x10001
    s_lshl_b32 s80, s80, 2
    s_add_u32 s79, s79, s80
    s_and_b32 s80, {s(sWv)}, 1
    s_lshl_b32 s80, s80, 1
    s_add_u32 s79, s79, s80
    s_lshr_b32 s80, {s(sWv)}, 1
    s_lshl_b32 s80, s80, 3
    s_add_u32 s79, s79, s80
    s_lshl_b32 s79, s79, 11
    s_add_u32 s80, s79, 2048
    s_lshl_b32 s81, {s(sWv)}, 12
    s_add_u32 m0, s81, {P0_WO}
    buffer_load_dwordx4 {v(vL16)}, {WOS}, s79 offen lds
    buffer_load_dwordx4 {v(vL16)}, {WOS}, s79 offen offset:1024 lds
    s_add_u32 m0, s81, {P0_WO + 2048}
    buffer_load_dwordx4 {v(vL16)}, {WOS}, s80 offen lds
    buffer_load_dwordx4 {v(vL16)}, {WOS}, s80 offen offset:1024 lds""")
    two = k.vtok()
    toks = {}
    for j in range(5): toks[j] = w_dma(k, j)
    k.raw(f"""s_or_b32 s79, s2, {s(sWv)}
    s_cmp_lg_u32 s79, 0
    s_cbranch_scc1 {Ln}_b
    s_waitcnt vmcnt(28)
    v_add_u32 v15, 16, v15
    v_cmp_eq_u32 vcc, 0, v15
    v_cndmask_b32 v15, v15, 16, vcc
    s_mov_b64 exec, 1
    buffer_store_dword v15, v14, {WS}, 0 offen sc1
    buffer_store_dword v15, v14, {DBGS}, 0 offen sc1
    s_mov_b64 exec, -1
    {Ln}_b:""")
    tables(k)
    Lz = k.label("zero")
    k.raw(f"""s_cmp_lg_u32 s2, 0
    s_cbranch_scc1 {Lz}
    s_cmp_lg_u32 {s(sWv)}, 1
    s_cbranch_scc1 {Lz}
    v_lshlrev_b32 v16, 7, v0
    v_mov_b32 v17, 0
    s_mov_b32 s79, {CNT}
    s_mov_b64 exec, 0xffff
    buffer_store_dword v17, v16, {WS}, s79 offen sc1
    s_mov_b64 exec, -1
    {Lz}:""")
    k.wait(vm=tx)
    k("s_barrier")
    vX = 16
    k(f"""v_lshrrev_b32 v10, 4, v0
    v_mul_u32_u24 v10, 2080, v10
    v_and_b32 v11, 15, v0
    v_lshlrev_b32 v11, 1, v11
    v_add_u32 v10, v10, v11
    s_lshl_b32 s79, {s(sWv)}, 5
    s_add_u32 s79, s79, {P0_X}
    v_add_u32 v10, s79, v10""")
    for aa in range(2):
        for h in range(2):
            for e in range(8):
                e2 = 8 * h + e
                k(f"ds_read_u16 {v(vX+16*aa+e2)}, v10 offset:{aa*4*2080 + e2*128}")
            k("s_waitcnt lgkmcnt(0)")
    for i in range(32): k(f"v_lshlrev_b32 {v(vX+i)}, 16, {v(vX+i)}")
    k(f"s_mov_b32 s66, {XP}\ns_mov_b32 s67, {HB}")
    ln_tail(k, "mid", vX, P0_STG, P0_ST, 66, 67)
    k.wait(vm=two)
    k("s_barrier")
    k(f"""v_and_b32 v10, 31, v0
    v_bfe_u32 v11, v10, 2, 1
    v_lshlrev_b32 v11, 1, v11
    v_lshrrev_b32 v12, 5, v0
    v_add_u32 v11, v11, v12
    v_lshlrev_b32 v11, 5, v11
    v_lshrrev_b32 v12, 3, v10
    v_lshlrev_b32 v12, 2, v12
    v_and_b32 v13, 3, v0
    v_add_u32 v12, v12, v13
    v_lshl_add_u32 v11, v12, 7, v11
    s_and_b32 s79, s2, 1
    s_lshl_b32 s79, s79, 3
    s_add_u32 s79, s79, {s(sWv)}
    s_lshl_b32 s80, s79, 1
    s_add_u32 s80, s80, {P0_WO}
    v_add_u32 v11, s80, v11
    v_lshrrev_b32 v12, 5, v0
    v_lshlrev_b32 v12, 16, v12
    v_lshl_add_u32 v12, v10, 4, v12
    s_lshl_b32 s79, s79, 17
    s_lshr_b32 s80, s2, 2
    s_lshl_b32 s80, s80, 10
    s_add_u32 s79, s79, s80
    s_bfe_u32 s80, s2, 0x10001
    s_lshl_b32 s80, s80, 9
    s_add_u32 s79, s79, s80
    s_add_u32 s79, s79, {WOP}
    s_add_u32 s80, s79, {4 << 17}""")
    for t in range(2):
        for j in range(8):
            op = "ds_read_u16_d16_hi" if j & 1 else "ds_read_u16"
            k(f"{op} {v(16+8*(j&1)+4*t+(j>>1))}, v11 offset:{j*2048 + 8*t}")
        k("s_waitcnt lgkmcnt(0)")
    for i in range(8): k(f"v_or_b32 {v(16+i)}, {v(16+i)}, {v(24+i)}")
    k(f"""buffer_store_dwordx4 v[16:19], v12, {WS}, s79 offen sc1
    buffer_store_dwordx4 v[20:23], v12, {WS}, s80 offen sc1""")
    Lp = k.label("npoll")
    k.raw(f"""s_cmp_lg_u32 {s(sWv)}, 0
    s_cbranch_scc1 {Lp}_done
    s_mov_b32 {s(sSpin)}, {SPIN_MAX}
    {Lp}:
    buffer_load_dword v15, v14, {DBGS}, 0 offen sc1
    s_waitcnt vmcnt(0)
    v_cmp_eq_u32 vcc, 0, v15
    s_cbranch_vccz {Lp}_got
    s_sub_u32 {s(sSpin)}, {s(sSpin)}, 1
    s_cmp_lg_u32 {s(sSpin)}, 0
    s_cbranch_scc1 {Lp}
    {Lp}_got:
    v_mov_b32 v10, {P0_ST + 512}
    ds_write_b32 v10, v15
    {Lp}_done:
    s_waitcnt vmcnt(0) lgkmcnt(0)
    s_barrier
    v_mov_b32 v10, {P0_ST + 512}
    ds_read_b32 v11, v10
    s_waitcnt lgkmcnt(0)
    v_readfirstlane_b32 {s(sNonce)}, v11""")
    k(f"""s_lshl_b32 s79, {s(sR)}, 7
    s_lshl_b32 s80, {s(sG)}, 2
    s_add_u32 s80, s80, s79
    s_add_u32 s80, s80, {FL_A0}""")
    signal(k, 80)
    stamp(k, 1)
    return toks

def finish(k):
    if CFG["stamps"]:
        L = k.label("st")
        k.raw(f"""s_cmp_lg_u32 {s(sWv)}, 0
        s_cbranch_scc1 {L}
        s_lshl_b32 s79, s2, 8
        s_add_u32 s79, s79, {STAMPS}
        v_lshlrev_b32 v10, 2, v0
        buffer_store_dword {v(vStamp)}, v10, {WS}, s79 offen
        {L}:""")
    k.raw("s_waitcnt vmcnt(0) lgkmcnt(0)\nL_END:\ns_endpgm")

HEADER = """; Kernarg layout (88 bytes): A_x, A_wqkv, A_wo, B_x, dft_seq_re, dft_seq_im, dft_hid_re, dft_hid_im, d_out, d_debug, d_ws
; @launch grid=(256,1,1) block=(256,1,1) lds=%d
.amdgcn_target "amdgcn-amd-amdhsa--gfx950"
.text
.globl %s
.p2align 8
.type %s,@function
%s:
"""
FOOTER = """
.section .rodata,"a"
.p2align 6
.amdhsa_kernel %s
  .amdhsa_next_free_vgpr 512
  .amdhsa_next_free_sgpr 102
  .amdhsa_accum_offset 256
  .amdhsa_group_segment_fixed_size 0
  .amdhsa_kernarg_size 88
  .amdhsa_user_sgpr_count 2
  .amdhsa_user_sgpr_kernarg_segment_ptr 1
  .amdhsa_system_sgpr_workgroup_id_x 1
  .amdhsa_float_denorm_mode_32 3
.end_amdhsa_kernel
"""

def build(**cfg):
    CFG.update(cfg)
    k = K()
    entry(k)
    toks = p0(k)
    if CFG["stop"] != "p0":
        import phases
        phases.rest(k, toks, CFG)
    finish(k)
    return HEADER % (LDS_BYTES, NAME, NAME, NAME) + k.text() + FOOTER % NAME

if __name__ == "__main__":
    import argparse
    ap = argparse.ArgumentParser()
    ap.add_argument("-o", default="interleave_layers__linear_attn_block__spectral_fnet__prompt.s")
    ap.add_argument("--stop", default=None)
    ap.add_argument("--stamps", action="store_true")
    x = ap.parse_args()
    import gen as g
    txt = g.build(stop=x.stop, stamps=x.stamps)
    open(x.o, "w").write(txt)
    print("wrote", x.o, len(txt), "bytes,", txt.count("\n"), "lines")
```

```python
import sys
sys.path.insert(0, "gen")
from asm import K, v, a, s
from layout import *

NAME = "interleave_layers__linear_attn_block__spectral_fnet__prompt_kernel"
CFG = dict(stop=None, stamps=False)

SRD_WS, SRD_W, SRD_X, SRD_WO, SRD_OUT, SRD_DBG = 4, 8, 12, 16, 20, 24
sR, sG, sWv, sNonce, sL, sSt0 = 28, 29, 30, 31, 32, 33
sA0, sWf0 = 34, 50
sT = 66
sSpin = 95
WS, WQ, XS, WOS, OUTS, DBGS = (s(x, 4) for x in (SRD_WS, SRD_W, SRD_X, SRD_WO, SRD_OUT, SRD_DBG))
vLane, vL16 = 0, 1
vW, vWq, vTr, vTrH = 2, 4, 6, 8
vStamp = 255
RING_SLOT = 16384
NRING = 7
SCR = NRING * RING_SLOT
P0_X = SCR
P0_WO = SCR + 16640
P0_STG = 5 * RING_SLOT
P0_ST = 6 * RING_SLOT
LDS_BYTES = 163840
SPIN_MAX = 1 << 17

def stamp(k, idx):
    if not CFG["stamps"]: return
    k.raw(f"""s_memrealtime s[96:97]
    s_memtime s[98:99]
    s_lshl_b32 s100, {s(sL)}, 4
    s_add_u32 m0, s100, {idx}
    s_waitcnt lgkmcnt(0)
    v_writelane_b32 {v(vStamp)}, s96, m0
    s_add_u32 m0, s100, {idx + 32}
    v_writelane_b32 {v(vStamp)}, s98, m0""")

def srd(k, dst, lo, size):
    k(f"""s_mov_b32 {s(dst)}, {s(lo)}
    s_mov_b32 {s(dst+1)}, {s(lo+1)}
    s_mov_b32 {s(dst+2)}, {size}
    s_mov_b32 {s(dst+3)}, 0x00020000""")

def entry(k):
    k(f"""s_cmp_ge_u32 s2, 256
    s_cbranch_scc1 L_END
    s_load_dwordx2 s[66:67], s[0:1], 0
    s_load_dwordx2 s[68:69], s[0:1], 8
    s_load_dwordx2 s[70:71], s[0:1], 16
    s_load_dwordx4 s[72:75], s[0:1], 64
    s_load_dwordx2 s[76:77], s[0:1], 80
    v_lshrrev_b32 v1, 6, v0
    v_and_b32 v0, 63, v0
    v_readfirstlane_b32 {s(sWv)}, v1
    s_and_b32 s78, s2, 7
    s_lshr_b32 s79, s78, 1
    s_lshl_b32 s79, s79, 2
    s_lshr_b32 s80, s2, 6
    s_add_u32 {s(sR)}, s79, s80
    s_and_b32 s79, s2, 1
    s_lshl_b32 s79, s79, 3
    s_lshr_b32 s80, s2, 3
    s_and_b32 s80, s80, 7
    s_add_u32 {s(sG)}, s79, s80
    s_lshl_b32 s79, {s(sG)}, 1
    s_lshl_b32 s80, {s(sR)}, 2
    s_add_u32 s79, s79, s80
    s_and_b32 {s(sSt0)}, s79, {CFG.get('rotmask', 15)}
    s_mov_b32 {s(sL)}, 0
    s_mov_b32 {s(sNonce)}, 0""")
    for j in range(16):
        k(f"""s_add_u32 s79, {s(sSt0)}, {j}
        s_and_b32 s79, s79, 15
        s_lshl_b32 {s(sA0+j)}, s79, 12
        s_mul_i32 {s(sWf0+j)}, s79, 6144""")
    k(f"v_lshlrev_b32 {v(vL16)}, 4, {v(vLane)}")
    if CFG["stamps"]: k(f"v_mov_b32 {v(vStamp)}, 0")
    k("s_waitcnt lgkmcnt(0)")
    srd(k, SRD_X, 66, 4194304)
    srd(k, SRD_W, 68, 6291456)
    srd(k, SRD_WO, 70, 2097152)
    srd(k, SRD_OUT, 72, 4194304)
    srd(k, SRD_DBG, 74, 256)
    srd(k, SRD_WS, 76, WS_SIZE)
    stamp(k, 0)
    k(f"""v_lshrrev_b32 v10, 3, v0
    v_lshrrev_b32 v11, 1, v10
    v_and_b32 v11, 1, v11
    v_bfe_u32 v12, v0, 2, 1
    v_xor_b32 v11, v11, v12
    v_lshlrev_b32 v11, 6, v11
    v_and_b32 v12, 3, v0
    v_lshlrev_b32 v12, 4, v12
    v_add_u32 v11, v11, v12
    s_mov_b32 s79, {64*6144}
    v_mul_lo_u32 v10, s79, v10
    v_add_u32 v10, v10, v11
    s_mul_i32 s79, {s(sWv)}, {16*6144}
    s_lshl_b32 s80, {s(sG)}, 7
    s_add_u32 s79, s79, s80
    v_add_u32 {v(vWq)}, s79, v10
    v_add_u32 {v(vWq+1)}, {512*6144}, {v(vWq)}
    v_add_u32 {v(vW)}, 2048, {v(vWq)}
    v_add_u32 {v(vW+1)}, 2048, {v(vWq+1)}""")
    k(f"""v_lshrrev_b32 v10, 5, v0
    v_lshlrev_b32 v10, 10, v10
    v_bfe_u32 v11, v0, 2, 2
    v_lshlrev_b32 v12, 7, v11
    v_add_u32 v10, v10, v12
    v_bfe_u32 v12, v0, 4, 1
    v_lshlrev_b32 v12, 5, v12
    v_add_u32 v10, v10, v12
    v_and_b32 v12, 3, v0
    v_lshlrev_b32 v12, 3, v12
    v_add_u32 v10, v10, v12
    v_lshrrev_b32 v11, 1, v11
    v_lshlrev_b32 v11, 6, v11
    v_add_u32 {v(vTr)}, v10, v11
    v_xor_b32 {v(vTr+1)}, 64, {v(vTr)}
    v_add_u32 {v(vTrH)}, 0x10000, {v(vTr)}
    v_add_u32 {v(vTrH+1)}, 0x10000, {v(vTr+1)}""")

def w_dma(k, j):
    slot = (j % NRING) * RING_SLOT
    if j < 16:
        for hb in range(2):
            k(f"""s_lshl_b32 s79, {s(sWv)}, 12
            s_add_u32 m0, s79, {slot + hb*1024}
            buffer_load_dwordx4 {v(vW+hb)}, {WQ}, {s(sWf0+j)} offen lds
            buffer_load_dwordx4 {v(vW+hb)}, {WQ}, {s(sWf0+j)} offen offset:2048 lds""")
    else:
        for sh in range(2):
            for hb in range(2):
                k(f"""s_lshl_b32 s79, {s(sWv)}, 11
                s_add_u32 m0, s79, {slot + sh*8192 + hb*1024}
                buffer_load_dwordx4 {v(vWq+hb)}, {WQ}, {s(sWf0 + 2*(j-16) + sh)} offen lds""")
    return k.vtok()

def cos_table_block(k, vB, vM, vAdd, cj, addj, mask, scale, vout, vt, lanemask=None):
    k(f"s_mov_b32 s79, 0x{scale:08x}")
    for j in range(8):
        t = vt + j
        k(f"v_add_u32 {v(t)}, {cj[j]}, {v(vB)}")
        k(f"v_mad_u32_u24 {v(t)}, {v(t)}, {v(vM)}, {v(vAdd)}")
        if addj[j]: k(f"v_add_u32 {v(t)}, {addj[j]}, {v(t)}")
        k(f"""v_and_b32 {v(t)}, {mask}, {v(t)}
        v_cvt_f32_u32 {v(t)}, {v(t)}
        v_mul_f32 {v(t)}, s79, {v(t)}""")
    for j in range(8): k(f"v_cos_f32 {v(vt+j)}, {v(vt+j)}")
    if lanemask is not None:
        for j in range(8): k(f"v_cndmask_b32 {v(vt+j)}, 0, {v(vt+j)}, {lanemask}")
    for i in range(4): k(f"v_cvt_pk_bf16_f32 {v(vout+i)}, {v(vt+2*i)}, {v(vt+2*i+1)}")

import struct
def f32(x): return struct.unpack("<I", struct.pack("<f", x))[0]

def tables(k):
    Lf, Lc, Ld = k.label("ftab"), k.label("ctab"), k.label("tabdone")
    vB, vM, vAdd, vo, vt, vad = 100, 101, 102, 104, 108, 103
    k(f"""s_cmp_ge_u32 {s(sWv)}, 2
    s_cbranch_scc1 {Lf}""")
    k.raw(f"""s_lshl_b32 s80, {s(sR)}, 1
    s_add_u32 s80, s80, {s(sWv)}
    s_lshr_b32 s81, s80, 2
    s_and_b32 s82, s80, 3
    s_lshr_b32 s83, s81, 1
    s_and_b32 s83, s83, 1
    s_lshl_b32 s83, s83, 5
    s_and_b32 s84, s81, 1
    s_lshl_b32 s84, s84, 2
    s_add_u32 s83, s83, s84
    s_lshr_b32 s84, s81, 2
    s_lshr_b32 s85, s82, 1
    s_sub_u32 s86, s84, s85
    s_lshl_b32 s86, s86, 8
    s_and_b32 s86, s86, 1023
    s_and_b32 s87, s82, 1
    s_lshl_b32 s87, s87, 5
    s_add_u32 s87, s87, {s(sG)}
    v_bfe_u32 v103, v0, 2, 2
    v_lshlrev_b32 v103, 3, v103
    v_and_b32 v104, 3, v0
    v_add_u32 v103, v103, v104
    v_add_u32 {v(vM)}, s83, v103
    v_lshrrev_b32 v103, 4, v0
    v_lshlrev_b32 v103, 8, v103
    v_add_u32 {v(vB)}, s87, v103
    v_mov_b32 {v(vAdd)}, s86""")
    cj = [16 * (j >> 2) + 64 * (j & 3) for j in range(8)]
    save = (k.vm, k.lg)
    cos_table_block(k, vB, vM, vAdd, cj, [0] * 8, 1023, f32(1 / 1024), vo, vt)
    k.raw(f"""s_lshl_b32 s81, {s(sG)}, 15
    s_lshl_b32 s80, s80, 10
    s_add_u32 s80, s80, s81
    s_add_u32 s80, s80, {HTAB}
    buffer_store_dwordx4 {v(vo,4)}, {v(vL16)}, {WS}, s80 offen sc1
    s_branch {Ld}
    {Lf}:
    s_cmp_eq_u32 {s(sWv)}, 3
    s_cbranch_scc1 {Lc}
    s_cmp_ge_u32 s2, 32
    s_cbranch_scc1 {Ld}
    s_lshr_b32 s80, s2, 3
    s_lshl_b32 s80, s80, 4
    s_bfe_u32 s81, s2, 0x10002
    s_and_b32 s82, s2, 3
    s_lshl_b32 s82, s82, 1
    v_and_b32 v103, 15, v0
    v_add_u32 v103, s80, v103
    s_lshl_b32 s83, s81, 6
    s_lshl_b32 s84, s81, 5
    v_cmp_eq_u32 vcc, 0, v103
    v_mov_b32 v104, s83
    v_cndmask_b32 {v(vM)}, v103, v104, vcc
    v_mov_b32 v104, s84
    v_cndmask_b32 {v(vAdd)}, v104, 0, vcc
    v_lshrrev_b32 v103, 5, v0
    v_bfe_u32 v104, v0, 4, 1
    v_lshlrev_b32 v104, 6, v104
    v_add_u32 v103, v103, v104
    v_add_u32 {v(vB)}, s82, v103""")
    cos_table_block(k, vB, vM, vAdd, [8 * j for j in range(8)], [0] * 8, 127, f32(1 / 128), vo, vt)
    k.raw(f"""s_lshl_b32 s80, s2, 10
    s_add_u32 s80, s80, {FTAB}
    buffer_store_dwordx4 {v(vo,4)}, {v(vL16)}, {WS}, s80 offen sc1
    s_branch {Ld}
    {Lc}:
    s_cmp_ge_u32 s2, 16
    s_cbranch_scc1 {Ld}
    s_lshr_b32 s80, s2, 2
    s_lshl_b32 s80, s80, 2
    s_and_b32 s81, s2, 3
    s_lshl_b32 s81, s81, 2
    v_and_b32 v103, 3, v0
    v_add_u32 {v(vM)}, s80, v103
    v_mov_b32 {v(vB)}, s81
    v_mov_b32 {v(vAdd)}, 0
    v_lshrrev_b32 v103, 4, v0
    v_bfe_u32 v104, v0, 2, 2
    v_cmp_eq_u32 s[82:83], v103, v104""")
    cos_table_block(k, vB, vM, vAdd, [j >> 1 for j in range(8)], [12 * (j & 1) for j in range(8)], 15, f32(1 / 16), vo, vt,
                    lanemask="s[82:83]")
    k.raw(f"""s_lshl_b32 s80, s2, 10
    s_add_u32 s80, s80, {CTAB}
    buffer_store_dwordx4 {v(vo,4)}, {v(vL16)}, {WS}, s80 offen sc1
    {Ld}:""")
    k.vm, k.lg = save

def ln_tail(k, mode, vX, stg, stat, sXP, sH):
    vP, vA, vB2, vS, vU, vQ = 48, 64, 65, 66, 70, 74
    if mode == "final":
        for i in range(16):
            k(f"v_cvt_pk_bf16_f32 {v(vP+i)}, {v(vX+2*i)}, {v(vX+2*i+1)}")
        k(f"""v_lshrrev_b32 {v(vA)}, 4, v0
        v_mul_u32_u24 {v(vA)}, 2080, {v(vA)}
        v_and_b32 {v(vB2)}, 15, v0
        v_lshlrev_b32 {v(vB2)}, 1, {v(vB2)}
        v_add_u32 {v(vA)}, {v(vA)}, {v(vB2)}
        s_lshl_b32 s79, {s(sWv)}, 5
        s_add_u32 s79, s79, {stg}
        v_add_u32 {v(vA)}, s79, {v(vA)}""")
        for aa in range(2):
            for i in range(8):
                off = aa * 4 * 2080 + (2 * i) * 128
                k(f"ds_write_b16 {v(vA)}, {v(vP+8*aa+i)} offset:{off}")
                k(f"ds_write_b16_d16_hi {v(vA)}, {v(vP+8*aa+i)} offset:{off+128}")
                if i % 4 == 3: k("s_waitcnt lgkmcnt(0)")
        k("s_waitcnt lgkmcnt(0)\ns_barrier")
        k(f"""s_mul_i32 s79, {s(sWv)}, {2*2080}
        s_add_u32 s79, s79, {stg}
        v_add_u32 {v(vA)}, s79, {v(vL16)}""")
        for i, off in enumerate((0, 1024, 2080, 3104)):
            k(f"ds_read_b128 {v(vP+4*i,4)}, {v(vA)} offset:{off}")
        k(f"""s_lshr_b32 s79, {s(sG)}, 1
        s_lshl_b32 s79, s79, 4
        s_add_u32 s79, s79, {s(sR)}
        s_and_b32 s80, {s(sG)}, 1
        s_lshl_b32 s80, s80, 10
        s_add_u32 s79, s79, s80
        s_lshl_b32 s80, {s(sWv)}, 8
        s_add_u32 s79, s79, s80
        s_lshl_b32 s79, s79, 11
        s_add_u32 s80, s79, {128*2048}
        s_waitcnt lgkmcnt(0)
        buffer_store_dwordx4 {v(vP,4)}, {v(vL16)}, {OUTS}, s79 offen
        buffer_store_dwordx4 {v(vP+4,4)}, {v(vL16)}, {OUTS}, s79 offen offset:1024
        buffer_store_dwordx4 {v(vP+8,4)}, {v(vL16)}, {OUTS}, s80 offen
        buffer_store_dwordx4 {v(vP+12,4)}, {v(vL16)}, {OUTS}, s80 offen offset:1024""")
        return
    for i in range(16):
        k(f"v_cvt_pk_bf16_f32 {v(vP+i)}, {v(vX+2*i)}, {v(vX+2*i+1)}")
    k(f"""v_and_b32 {v(vA)}, 15, v0
    v_and_b32 {v(vB2)}, 7, v0
    s_lshl_b32 s79, {s(sWv)}, 1
    v_xor_b32 {v(vB2)}, s79, {v(vB2)}
    v_lshl_add_u32 {v(vA)}, {v(vA)}, 3, {v(vB2)}
    v_lshlrev_b32 {v(vA)}, 4, {v(vA)}
    v_lshrrev_b32 {v(vB2)}, 4, v0
    v_lshl_add_u32 {v(vA)}, {v(vB2)}, 11, {v(vA)}
    v_add_u32 {v(vA)}, {stg}, {v(vA)}
    v_xor_b32 {v(vB2)}, 16, {v(vA)}""")
    for aa in range(2):
        k(f"ds_write_b128 {v(vA)}, {v(vP+8*aa,4)} offset:{aa*8192}")
        k(f"ds_write_b128 {v(vB2)}, {v(vP+8*aa+4,4)} offset:{aa*8192}")
    for aa in range(2):
        x = vX + 16 * aa
        k(f"v_add_f32 {v(vS+aa)}, {v(x)}, {v(x+1)}")
        for i in range(2, 16): k(f"v_add_f32 {v(vS+aa)}, {v(vS+aa)}, {v(x+i)}")
    def rowsum2(r0, t0):
        cur, nxt = r0, t0
        for sh in (8, 4, 2, 1):
            for aa in range(2):
                k(f"v_add_f32_dpp {v(nxt+aa)}, {v(cur+aa)}, {v(cur+aa)} row_ror:{sh} row_mask:0xf bank_mask:0xf")
            cur, nxt = nxt, cur
        return cur
    m = rowsum2(vS, vU)
    for aa in range(2): k(f"v_mul_f32 {v(vQ+2*aa)}, 0x{f32(1/256):08x}, {v(m+aa)}")
    for aa in range(2):
        x = vX + 16 * aa
        for i in range(16):
            k(f"v_sub_f32 {v(vU+2)}, {v(x+i)}, {v(vQ+2*aa)}")
            if i == 0: k(f"v_mul_f32 {v(vS+aa)}, {v(vU+2)}, {v(vU+2)}")
            else: k(f"v_fmac_f32 {v(vS+aa)}, {v(vU+2)}, {v(vU+2)}")
    m = rowsum2(vS, vU)
    for aa in range(2): k(f"v_mov_b32 {v(vQ+2*aa+1)}, {v(m+aa)}")
    k(f"""v_lshrrev_b32 {v(vU)}, 4, v0
    v_lshlrev_b32 {v(vU)}, 5, {v(vU)}
    s_lshl_b32 s79, {s(sWv)}, 3
    s_add_u32 s79, s79, {stat}
    v_add_u32 {v(vU+1)}, s79, {v(vU)}
    s_mov_b32 exec_lo, 0x00010001
    s_mov_b32 exec_hi, 0x00010001
    ds_write_b64 {v(vU+1)}, {v(vQ,2)}
    ds_write_b64 {v(vU+1)}, {v(vQ+2,2)} offset:128
    s_mov_b64 exec, -1
    v_add_u32 {v(vU)}, {stat}, {v(vU)}
    s_waitcnt lgkmcnt(0)
    s_barrier""")
    vR = 80
    for aa in range(2):
        k(f"ds_read_b128 {v(vR+8*aa,4)}, {v(vU)} offset:{aa*128}")
        k(f"ds_read_b128 {v(vR+8*aa+4,4)}, {v(vU)} offset:{aa*128+16}")
    vRB = 96
    k(f"""s_lshl_b32 s79, {s(sWv)}, 12
    s_add_u32 s79, s79, {stg}
    v_add_u32 {v(vA)}, s79, {v(vL16)}""")
    for i in range(4): k(f"ds_read_b128 {v(vRB+4*i,4)}, {v(vA)} offset:{i*1024}")
    k(f"""v_lshrrev_b32 {v(vB2)}, 3, v0
    v_xor_b32 {v(vB2)}, {v(vB2)}, v0
    v_and_b32 {v(vB2)}, 7, {v(vB2)}
    v_and_b32 {v(vA)}, 56, v0
    v_or_b32 {v(vB2)}, {v(vB2)}, {v(vA)}
    v_lshlrev_b32 {v(vB2)}, 4, {v(vB2)}
    s_lshl_b32 s79, {s(sR)}, 7
    s_lshl_b32 s80, {s(sG)}, 3
    s_add_u32 s79, s79, s80
    s_lshl_b32 s80, {s(sWv)}, 1
    s_add_u32 s79, s79, s80
    s_lshl_b32 s79, s79, 11
    s_add_u32 s79, s79, {s(sXP)}
    s_waitcnt lgkmcnt(0)""")
    for i in range(4):
        k(f"buffer_store_dwordx4 {v(vRB+4*i,4)}, {v(vB2)}, {WS}, s79 offen offset:{i*1024} sc1")
    vM_, vRs = 112, 114
    for aa in range(2):
        b = vR + 8 * aa
        k(f"""v_add_f32 {v(vU)}, {v(b)}, {v(b+2)}
        v_add_f32 {v(vU+1)}, {v(b+4)}, {v(b+6)}
        v_add_f32 {v(vU)}, {v(vU)}, {v(vU+1)}
        v_mul_f32 {v(vM_+aa)}, 0.25, {v(vU)}
        v_add_f32 {v(vU)}, {v(b+1)}, {v(b+3)}
        v_add_f32 {v(vU+1)}, {v(b+5)}, {v(b+7)}
        v_add_f32 {v(vU)}, {v(vU)}, {v(vU+1)}
        v_mov_b32 {v(vU+1)}, 0""")
        for i in range(4):
            k(f"""v_sub_f32 {v(vU+2)}, {v(b+2*i)}, {v(vM_+aa)}
            v_fmac_f32 {v(vU+1)}, {v(vU+2)}, {v(vU+2)}""")
        k(f"""v_fmac_f32 {v(vU)}, 0x{f32(256.0):08x}, {v(vU+1)}
        v_mov_b32 {v(vU+1)}, 0x{f32(1e-5):08x}
        v_fmac_f32 {v(vU+1)}, 0x{f32(1/1024):08x}, {v(vU)}
        v_rsq_f32 {v(vRs+aa)}, {v(vU+1)}""")
    for aa in range(2):
        k(f"v_mul_f32 {v(vU+aa)}, {v(vM_+aa)}, {v(vRs+aa)}")
    for aa in range(2):
        x = vX + 16 * aa
        for i in range(16):
            k(f"v_fma_f32 {v(x+i)}, {v(x+i)}, {v(vRs+aa)}, -{v(vU+aa)}")
    for i in range(16):
        k(f"v_cvt_pk_bf16_f32 {v(vP+i)}, {v(vX+2*i)}, {v(vX+2*i+1)}")
    k(f"""v_and_b32 {v(vA)}, 15, v0
    v_lshlrev_b32 {v(vA)}, 12, {v(vA)}
    v_lshrrev_b32 {v(vB2)}, 4, v0
    v_lshl_add_u32 {v(vA)}, {v(vB2)}, 4, {v(vA)}
    s_lshl_b32 s79, {s(sWv)}, 10
    v_add_u32 {v(vA)}, s79, {v(vA)}
    s_lshl_b32 s79, {s(sR)}, 2
    s_lshr_b32 s80, {s(sG)}, 2
    s_add_u32 s79, s79, s80
    s_lshl_b32 s79, s79, 16
    s_and_b32 s80, {s(sG)}, 3
    s_lshl_b32 s80, s80, 7
    s_add_u32 s79, s79, s80
    s_add_u32 s79, s79, {s(sH)}""")
    for aa in range(2):
        for hb in range(2):
            k(f"buffer_store_dwordx4 {v(vP+8*aa+4*hb,4)}, {v(vA)}, {WS}, s79 offen offset:{hb*512+aa*64} sc1")

def signal(k, soff):
    L = k.label("sig")
    k.raw(f"""s_cmp_lg_u32 {s(sWv)}, 0
    s_cbranch_scc1 {L}
    v_mov_b32 v10, {s(sNonce)}
    v_mov_b32 v11, 0
    s_mov_b64 exec, 1
    buffer_store_dword v10, v11, {WS}, {s(soff)} offen sc1
    s_mov_b64 exec, -1
    {L}:""")

def poll16(k, soff):
    L = k.label("poll")
    k.raw(f"""s_cmp_lg_u32 {s(sWv)}, 0
    s_cbranch_scc1 {L}_done
    v_and_b32 v10, 15, v0
    v_lshlrev_b32 v10, 2, v10
    s_mov_b32 {s(sSpin)}, {SPIN_MAX}
    {L}:
    buffer_load_dword v11, v10, {WS}, {s(soff)} offen sc1
    s_waitcnt vmcnt(0)
    v_cmp_ne_u32 vcc, {s(sNonce)}, v11
    s_cbranch_vccz {L}_done
    s_sub_u32 {s(sSpin)}, {s(sSpin)}, 1
    s_cmp_lg_u32 {s(sSpin)}, 0
    s_cbranch_scc1 {L}
    {L}_done:
    s_barrier""")

def p0(k):
    Ln = k.label("nonce")
    k.raw(f"""v_mov_b32 v14, 0
    s_or_b32 s79, s2, {s(sWv)}
    s_cmp_lg_u32 s79, 0
    s_cbranch_scc1 {Ln}_a
    buffer_load_dword v15, v14, {WS}, 0 offen sc1
    {Ln}_a:""")
    k(f"""s_lshr_b32 s79, {s(sG)}, 1
    s_lshl_b32 s79, s79, 4
    s_add_u32 s79, s79, {s(sR)}
    s_and_b32 s80, {s(sG)}, 1
    s_lshl_b32 s80, s80, 10
    s_add_u32 s79, s79, s80
    s_lshl_b32 s80, {s(sWv)}, 8
    s_add_u32 s79, s79, s80
    s_lshl_b32 s79, s79, 11
    s_add_u32 s80, s79, {128*2048}
    s_mul_i32 s81, {s(sWv)}, {2*2080}
    s_add_u32 m0, s81, {P0_X}
    buffer_load_dwordx4 {v(vL16)}, {XS}, s79 offen lds
    buffer_load_dwordx4 {v(vL16)}, {XS}, s79 offen offset:1024 lds
    s_add_u32 m0, s81, {P0_X + 2080}
    buffer_load_dwordx4 {v(vL16)}, {XS}, s80 offen lds
    buffer_load_dwordx4 {v(vL16)}, {XS}, s80 offen offset:1024 lds""")
    tx = k.vtok()
    k(f"""s_lshr_b32 s79, s2, 2
    s_lshl_b32 s79, s79, 4
    s_bfe_u32 s80, s2, 0x10001
    s_lshl_b32 s80, s80, 2
    s_add_u32 s79, s79, s80
    s_and_b32 s80, {s(sWv)}, 1
    s_lshl_b32 s80, s80, 1
    s_add_u32 s79, s79, s80
    s_lshr_b32 s80, {s(sWv)}, 1
    s_lshl_b32 s80, s80, 3
    s_add_u32 s79, s79, s80
    s_lshl_b32 s79, s79, 11
    s_add_u32 s80, s79, 2048
    s_lshl_b32 s81, {s(sWv)}, 12
    s_add_u32 m0, s81, {P0_WO}
    buffer_load_dwordx4 {v(vL16)}, {WOS}, s79 offen lds
    buffer_load_dwordx4 {v(vL16)}, {WOS}, s79 offen offset:1024 lds
    s_add_u32 m0, s81, {P0_WO + 2048}
    buffer_load_dwordx4 {v(vL16)}, {WOS}, s80 offen lds
    buffer_load_dwordx4 {v(vL16)}, {WOS}, s80 offen offset:1024 lds""")
    two = k.vtok()
    toks = {}
    for j in range(5): toks[j] = w_dma(k, j)
    k.raw(f"""s_or_b32 s79, s2, {s(sWv)}
    s_cmp_lg_u32 s79, 0
    s_cbranch_scc1 {Ln}_b
    s_waitcnt vmcnt(28)
    v_add_u32 v15, 16, v15
    v_cmp_eq_u32 vcc, 0, v15
    v_cndmask_b32 v15, v15, 16, vcc
    s_mov_b64 exec, 1
    buffer_store_dword v15, v14, {WS}, 0 offen sc1
    buffer_store_dword v15, v14, {DBGS}, 0 offen sc1
    s_mov_b64 exec, -1
    {Ln}_b:""")
    tables(k)
    Lz = k.label("zero")
    k.raw(f"""s_cmp_lg_u32 s2, 0
    s_cbranch_scc1 {Lz}
    s_cmp_lg_u32 {s(sWv)}, 1
    s_cbranch_scc1 {Lz}
    v_lshlrev_b32 v16, 7, v0
    v_mov_b32 v17, 0
    s_mov_b32 s79, {CNT}
    s_mov_b64 exec, 0xffff
    buffer_store_dword v17, v16, {WS}, s79 offen sc1
    s_mov_b64 exec, -1
    {Lz}:""")
    stamp(k, 2)
    k.wait(vm=tx)
    k("s_barrier")
    stamp(k, 3)
    vX = 16
    k(f"""v_lshrrev_b32 v10, 4, v0
    v_mul_u32_u24 v10, 2080, v10
    v_and_b32 v11, 15, v0
    v_lshlrev_b32 v11, 1, v11
    v_add_u32 v10, v10, v11
    s_lshl_b32 s79, {s(sWv)}, 5
    s_add_u32 s79, s79, {P0_X}
    v_add_u32 v10, s79, v10""")
    for aa in range(2):
        for h in range(2):
            for e in range(8):
                e2 = 8 * h + e
                k(f"ds_read_u16 {v(vX+16*aa+e2)}, v10 offset:{aa*4*2080 + e2*128}")
            k("s_waitcnt lgkmcnt(0)")
    for i in range(32): k(f"v_lshlrev_b32 {v(vX+i)}, 16, {v(vX+i)}")
    stamp(k, 4)
    k(f"s_mov_b32 s66, {XP}\ns_mov_b32 s67, {HB}")
    ln_tail(k, "mid", vX, P0_STG, P0_ST, 66, 67)
    stamp(k, 5)
    k.wait(vm=two)
    k("s_barrier")
    k(f"""v_and_b32 v10, 31, v0
    v_bfe_u32 v11, v10, 2, 1
    v_lshlrev_b32 v11, 1, v11
    v_lshrrev_b32 v12, 5, v0
    v_add_u32 v11, v11, v12
    v_lshlrev_b32 v11, 5, v11
    v_lshrrev_b32 v12, 3, v10
    v_lshlrev_b32 v12, 2, v12
    v_and_b32 v13, 3, v0
    v_add_u32 v12, v12, v13
    v_lshl_add_u32 v11, v12, 7, v11
    s_and_b32 s79, s2, 1
    s_lshl_b32 s79, s79, 3
    s_add_u32 s79, s79, {s(sWv)}
    s_lshl_b32 s80, s79, 1
    s_add_u32 s80, s80, {P0_WO}
    v_add_u32 v11, s80, v11
    v_lshrrev_b32 v12, 5, v0
    v_lshlrev_b32 v12, 16, v12
    v_lshl_add_u32 v12, v10, 4, v12
    s_lshl_b32 s79, s79, 17
    s_lshr_b32 s80, s2, 2
    s_lshl_b32 s80, s80, 10
    s_add_u32 s79, s79, s80
    s_bfe_u32 s80, s2, 0x10001
    s_lshl_b32 s80, s80, 9
    s_add_u32 s79, s79, s80
    s_add_u32 s79, s79, {WOP}
    s_add_u32 s80, s79, {4 << 17}""")
    for t in range(2):
        for j in range(8):
            op = "ds_read_u16_d16_hi" if j & 1 else "ds_read_u16"
            k(f"{op} {v(16+8*(j&1)+4*t+(j>>1))}, v11 offset:{j*2048 + 8*t}")
        k("s_waitcnt lgkmcnt(0)")
    for i in range(8): k(f"v_or_b32 {v(16+i)}, {v(16+i)}, {v(24+i)}")
    k(f"""buffer_store_dwordx4 v[16:19], v12, {WS}, s79 offen sc1
    buffer_store_dwordx4 v[20:23], v12, {WS}, s80 offen sc1""")
    stamp(k, 6)
    Lp = k.label("npoll")
    k.raw(f"""s_cmp_lg_u32 {s(sWv)}, 0
    s_cbranch_scc1 {Lp}_done
    s_mov_b32 {s(sSpin)}, {SPIN_MAX}
    {Lp}:
    buffer_load_dword v15, v14, {DBGS}, 0 offen sc1
    s_waitcnt vmcnt(0)
    v_cmp_eq_u32 vcc, 0, v15
    s_cbranch_vccz {Lp}_got
    s_sub_u32 {s(sSpin)}, {s(sSpin)}, 1
    s_cmp_lg_u32 {s(sSpin)}, 0
    s_cbranch_scc1 {Lp}
    {Lp}_got:
    v_mov_b32 v10, {P0_ST + 512}
    ds_write_b32 v10, v15
    {Lp}_done:
    s_waitcnt vmcnt(0) lgkmcnt(0)
    s_barrier
    v_mov_b32 v10, {P0_ST + 512}
    ds_read_b32 v11, v10
    s_waitcnt lgkmcnt(0)
    v_readfirstlane_b32 {s(sNonce)}, v11""")
    k(f"""s_lshl_b32 s79, {s(sR)}, 7
    s_lshl_b32 s80, {s(sG)}, 2
    s_add_u32 s80, s80, s79
    s_add_u32 s80, s80, {FL_A0}""")
    signal(k, 80)
    stamp(k, 1)
    return toks

def finish(k):
    if CFG["stamps"]:
        L = k.label("st")
        k.raw(f"""s_cmp_lg_u32 {s(sWv)}, 0
        s_cbranch_scc1 {L}
        s_lshl_b32 s79, s2, 8
        s_add_u32 s79, s79, {STAMPS}
        v_lshlrev_b32 v10, 2, v0
        buffer_store_dword {v(vStamp)}, v10, {WS}, s79 offen
        {L}:""")
    k.raw("s_waitcnt vmcnt(0) lgkmcnt(0)\nL_END:\ns_endpgm")

HEADER = """; Kernarg layout (88 bytes): A_x, A_wqkv, A_wo, B_x, dft_seq_re, dft_seq_im, dft_hid_re, dft_hid_im, d_out, d_debug, d_ws
; @launch grid=(256,1,1) block=(256,1,1) lds=%d
.amdgcn_target "amdgcn-amd-amdhsa--gfx950"
.text
.globl %s
.p2align 8
.type %s,@function
%s:
"""
FOOTER = """
.section .rodata,"a"
.p2align 6
.amdhsa_kernel %s
  .amdhsa_next_free_vgpr 512
  .amdhsa_next_free_sgpr 102
  .amdhsa_accum_offset 256
  .amdhsa_group_segment_fixed_size 0
  .amdhsa_kernarg_size 88
  .amdhsa_user_sgpr_count 2
  .amdhsa_user_sgpr_kernarg_segment_ptr 1
  .amdhsa_system_sgpr_workgroup_id_x 1
  .amdhsa_float_denorm_mode_32 3
.end_amdhsa_kernel
"""

def build(**cfg):
    CFG.update(cfg)
    k = K()
    entry(k)
    toks = p0(k)
    if CFG["stop"] != "p0":
        import phases
        phases.rest(k, toks, CFG)
    finish(k)
    return HEADER % (LDS_BYTES, NAME, NAME, NAME) + k.text() + FOOTER % NAME

if __name__ == "__main__":
    import argparse
    ap = argparse.ArgumentParser()
    ap.add_argument("-o", default="interleave_layers__linear_attn_block__spectral_fnet__prompt.s")
    ap.add_argument("--stop", default=None)
    ap.add_argument("--stamps", action="store_true")
    ap.add_argument("--x", default="")
    x = ap.parse_args()
    import gen as g
    extra = {}
    for t in x.x.split(","):
        if t:
            kk, _, vv = t.partition("=")
            extra[kk] = int(vv) if vv else True
    txt = g.build(stop=x.stop, stamps=x.stamps, **extra)
    open(x.o, "w").write(txt)
    print("wrote", x.o, len(txt), "bytes,", txt.count("\n"), "lines")
```

```python
from asm import K, v, a, s
from layout import *
import gen as G
from gen import (WS, WQ, OUTS, sR, sG, sWv, sNonce, sL, sA0, sWf0, vL16, vW, vWq, vTr, vTrH, NRING, RING_SLOT,
                 w_dma, signal, poll16, stamp, ln_tail, f32, sSpin, SPIN_MAX)

MF32 = "v_mfma_f32_32x32x16_bf16"
MF16 = "v_mfma_f32_16x16x32_bf16"
LOG2E = f32(1.4426950408889634)
EPS6 = f32(1e-6)
DM = 6
accK, accV, accQ, BR = 16, 48, 80, 112
RED, ZR, KVF, ZF = 131072, 114688, 115712, 119808
vRES = 232

def phi(k, regs, tmp):
    for g0 in range(0, len(regs), 8):
        grp = regs[g0:g0 + 8]
        for i, x in enumerate(grp): k(f"v_min_f32 {v(tmp+i)}, 0, {v(x)}")
        for i, x in enumerate(grp): k(f"v_sub_f32 {v(x)}, {v(x)}, {v(tmp+i)}")
        for i, x in enumerate(grp): k(f"v_mul_f32 {v(tmp+i)}, 0x{LOG2E:08x}, {v(tmp+i)}")
        for i, x in enumerate(grp): k(f"v_exp_f32 {v(tmp+i)}, {v(tmp+i)}")
        for i, x in enumerate(grp): k(f"v_add_f32 {v(x)}, 0x{EPS6:08x}, {v(x)}")
        for i, x in enumerate(grp): k(f"v_add_f32 {v(x)}, {v(x)}, {v(tmp+i)}")

def pack(k, dst, src, n):
    for i in range(n): k(f"v_cvt_pk_bf16_f32 {v(dst+i)}, {v(src+2*i)}, {v(src+2*i+1)}")

def rot_loads(k, j, vaddr, srd=WS, sc=" sc1"):
    for i in range(4):
        off = f" offset:{i*1024}" if i else ""
        k(f"buffer_load_dwordx4 {a(16*j+4*i,4)}, {v(vaddr)}, {srd}, {s(sA0+j)} offen{off}{sc}")
    return k.vtok()

def p1(k, cfg):
    vA = 10 + 3
    Ls = k.label("pf")
    k(f"s_cmp_eq_u32 {s(sL)}, 0\ns_cbranch_scc1 {Ls}")
    tD = {}
    for j in range(5): tD[j] = w_dma(k, j)
    k(f"{Ls}:")
    for j in (5, 6): tD[j] = w_dma(k, j)
    k(f"""s_mul_i32 s80, {s(sL)}, {FL_S5 - FL_A0}
    s_lshl_b32 s79, {s(sR)}, 7
    s_add_u32 s80, s80, s79
    s_add_u32 s80, s80, {FL_A0}""")
    poll16(k, 80)
    stamp(k, 2)
    k(f"""s_lshl_b32 s79, {s(sR)}, 2
    s_add_u32 s79, s79, {s(sWv)}
    s_lshl_b32 s79, s79, 16
    s_lshl_b32 s80, {s(sL)}, 22
    s_add_u32 s79, s79, s80
    s_add_u32 s79, s79, {HB}
    v_add_u32 {v(vA)}, s79, {v(vL16)}""")
    tA = {}
    for j in range(5): tA[j] = rot_loads(k, j, vA)
    ops = []
    for j in range(16):
        for w in range(4):
            for part, acc in ((0, accK), (1, accV)):
                for h in range(2):
                    ops.append((j, acc + 16 * h, 16 * j + 4 * w, (j % NRING) * RING_SLOT + w * 4096 + part * 2048, h, False,
                                j == 0 and w == 0))
    for jj in range(8):
        for sh in range(2):
            for w in range(4):
                for h in range(2):
                    ops.append((16 + jj, accQ + 16 * h, 16 * (2 * jj + sh) + 4 * w,
                                ((16 + jj) % NRING) * RING_SLOT + sh * 8192 + w * 2048, h, True,
                                jj == 0 and sh == 0 and w == 0))
    tR = {}
    def reads(m):
        j, acc, ar, off, h, isq, first = ops[m]
        b = BR + 4 * (m % 8)
        base = vTr + h if off + 512 < 65536 else vTrH + h
        o = off if off + 512 < 65536 else off - 65536
        assert 0 <= o and o + 512 < 65536
        if not cfg.get("notr"):
            k(f"ds_read_b64_tr_b16 {v(b,2)}, {v(base)} offset:{o}")
            k(f"ds_read_b64_tr_b16 {v(b+2,2)}, {v(base)} offset:{o+512}")
        tR[m] = k.ltok()
    def Y(j):
        tok = tD[j] if j >= 16 else max(tD[j], tA[j])
        if not cfg.get("nowait"): k.wait(vm=tok)
        if not cfg.get("nobar"): k("s_barrier")
        if j + 5 <= 15 and j + 5 not in tA: tA[j + 5] = k.vtok() if cfg.get("noA") else rot_loads(k, j + 5, vA)
        if j >= 2 and j + 5 <= 23: tD[j + 5] = k.vtok() if cfg.get("noW") else w_dma(k, j + 5)
    Y(0)
    for m in range(DM): reads(m)
    n = len(ops)
    for m in range(n):
        j, acc, ar, off, h, isq, first = ops[m]
        b = BR + 4 * (m % 8)
        k.wait(lg=tR[m])
        c = "0" if first else v(acc, 16)
        if isq: k(f"{MF32} {v(acc,16)}, {v(b,4)}, {a(ar,4)}, {c}")
        else: k(f"{MF32} {v(acc,16)}, {a(ar,4)}, {v(b,4)}, {c}")
        if m + DM < n:
            if (m + DM) % 16 == 0: Y((m + DM) // 16)
            reads(m + DM)
    stamp(k, 3)
    k("s_barrier")
    wo_dma(k, early=True)
    k(f"""v_and_b32 v10, 31, v0
    v_lshlrev_b32 v10, 11, v10
    v_lshrrev_b32 v11, 5, v0
    v_lshl_add_u32 v10, v11, 6, v10
    s_lshl_b32 s79, {s(sR)}, 2
    s_add_u32 s79, s79, {s(sWv)}
    s_lshl_b32 s79, s79, 16
    s_lshl_b32 s80, {s(sG)}, 7
    s_add_u32 s79, s79, s80
    s_lshl_b32 s80, {s(sL)}, 23
    s_add_u32 s79, s79, s80
    s_add_u32 s79, s79, {XP}""")
    for i in range(4):
        k(f"buffer_load_dwordx4 {v(vRES+4*i,4)}, v10, {WS}, s79 offen offset:{16*i} sc1")
    tRes = k.vtok()
    Pk, Pv, Pq, KVa, vZ, tmp = 144, 160, 176, 192, 224, 120
    phi(k, list(range(accK, accK + 32)), tmp)
    for h in range(2):
        x = accK + 16 * h
        k(f"v_add_f32 {v(vZ+h)}, {v(x)}, {v(x+1)}")
        for i in range(2, 16): k(f"v_add_f32 {v(vZ+h)}, {v(vZ+h)}, {v(x+i)}")
    pack(k, Pk, accK, 16)
    pack(k, Pv, accV, 16)
    for h in range(2):
        k(f"{MF32} {v(KVa+16*h,16)}, {v(Pk+8*h,4)}, {v(Pv+8*h,4)}, 0")
    for h in range(2):
        k(f"{MF32} {v(KVa+16*h,16)}, {v(Pk+8*h+4,4)}, {v(Pv+8*h+4,4)}, {v(KVa+16*h,16)}")
    for h in range(2):
        k(f"""v_mov_b32 {v(vZ+2+h)}, {v(vZ+h)}
        v_permlane32_swap_b32 {v(vZ+h)}, {v(vZ+2+h)}
        v_add_f32 {v(vZ+h)}, {v(vZ+h)}, {v(vZ+2+h)}""")
    k(f"""s_lshl_b32 s79, {s(sWv)}, 13
    s_add_u32 s79, s79, {RED}
    v_add_u32 v10, s79, {v(vL16)}
    v_and_b32 v11, 31, v0
    v_lshlrev_b32 v11, 2, v11
    s_lshl_b32 s79, {s(sWv)}, 8
    s_add_u32 s79, s79, {ZR}
    v_add_u32 v11, s79, v11""")
    for h in range(2):
        for q in range(4):
            k(f"ds_write_b128 v10, {v(KVa+16*h+4*q,4)} offset:{h*4096+q*1024}")
    k(f"""s_mov_b32 exec_hi, 0
    ds_write_b32 v11, {v(vZ)}
    ds_write_b32 v11, {v(vZ+1)} offset:128
    s_mov_b64 exec, -1
    s_waitcnt lgkmcnt(0)
    s_barrier""")
    k(f"""s_lshl_b32 s79, {s(sWv)}, 11
    s_add_u32 s79, s79, {RED}
    v_add_u32 v10, s79, {v(vL16)}
    v_lshlrev_b32 v11, 2, v0
    v_add_u32 v12, {ZR}, v11""")
    for w in range(4):
        for q in range(2):
            k(f"ds_read_b128 {v(16+8*w+4*q,4)}, v10 offset:{w*8192+q*1024}")
    for w in range(4): k(f"ds_read_b32 {v(48+w)}, v12 offset:{w*256}")
    k("s_waitcnt lgkmcnt(0)")
    for i in range(8):
        k(f"""v_add_f32 {v(16+i)}, {v(16+i)}, {v(24+i)}
        v_add_f32 {v(32+i)}, {v(32+i)}, {v(40+i)}""")
    for i in range(8): k(f"v_add_f32 {v(16+i)}, {v(16+i)}, {v(32+i)}")
    pack(k, 24, 16, 4)
    k(f"""v_add_f32 v48, v48, v49
    v_add_f32 v50, v50, v51
    v_add_f32 v48, v48, v50
    s_lshl_b32 s79, {s(sG)}, 4
    s_add_u32 s79, s79, {s(sR)}
    s_lshl_b32 s80, s79, 12
    s_lshl_b32 s81, {s(sWv)}, 10
    s_add_u32 s80, s80, s81
    s_lshl_b32 s81, {s(sL)}, 20
    s_add_u32 s80, s80, s81
    s_add_u32 s80, s80, {KVX}
    buffer_store_dwordx4 v[24:27], {v(vL16)}, {WS}, s80 offen sc1
    s_lshl_b32 s80, s79, 8
    s_lshl_b32 s81, {s(sL)}, 16
    s_add_u32 s80, s80, s81
    s_add_u32 s80, s80, {KVZ}""")
    Lz = k.label("zst")
    k.raw(f"""s_cmp_lg_u32 {s(sWv)}, 0
    s_cbranch_scc1 {Lz}
    buffer_store_dword v48, v11, {WS}, s80 offen sc1
    {Lz}:""")
    k(f"""s_waitcnt vmcnt(0)
    s_barrier
    s_lshl_b32 s79, {s(sL)}, 4
    s_add_u32 s79, s79, {s(sG)}
    s_lshl_b32 s79, s79, 7
    s_add_u32 s82, s79, {FL_S1}
    s_lshl_b32 s80, {s(sR)}, 2
    s_add_u32 s80, s80, s82""")
    signal(k, 80)
    stamp(k, 4)
    phi(k, list(range(accQ, accQ + 32)), tmp)
    pack(k, Pq, accQ, 16)
    poll16(k, 82)
    stamp(k, 5)
    k(f"""s_lshl_b32 s80, {s(sG)}, 16
    s_lshl_b32 s81, {s(sWv)}, 10
    s_add_u32 s80, s80, s81
    s_lshl_b32 s81, {s(sL)}, 20
    s_add_u32 s80, s80, s81
    s_add_u32 s80, s80, {KVX}""")
    toks = []
    for r in range(16):
        k(f"buffer_load_dwordx4 {v(16+4*r,4)}, {v(vL16)}, {WS}, s80 offen sc1")
        toks.append(k.vtok())
        if r < 15: k("s_add_u32 s80, s80, 4096")
    k(f"""s_lshl_b32 s80, {s(sG)}, 12
    s_lshl_b32 s81, {s(sL)}, 16
    s_add_u32 s80, s80, s81
    s_add_u32 s80, s80, {KVZ}
    v_lshlrev_b32 v11, 2, v0""")
    for r in range(16):
        off = f" offset:{r*256}" if r else ""
        k(f"buffer_load_dword {v(96+r)}, v11, {WS}, s80 offen{off} sc1")
    tz = k.vtok()
    k(f"""v_mov_b32 v120, 0x00003f80
    v_mov_b32 v121, 0x3f800000""")
    S = 112
    for i in range(8): k(f"v_mov_b32 {v(S+i)}, 0")
    for r in range(16):
        k.wait(vm=toks[r])
        for i in range(4):
            k(f"v_dot2_f32_bf16 {v(S+2*i)}, {v(16+4*r+i)}, v120, {v(S+2*i)}")
            k(f"v_dot2_f32_bf16 {v(S+2*i+1)}, {v(16+4*r+i)}, v121, {v(S+2*i+1)}")
    pack(k, 124, S, 4)
    k.wait(vm=tz)
    for i in range(8): k(f"v_add_f32 {v(96+i)}, {v(96+i)}, {v(104+i)}")
    for i in range(4): k(f"v_add_f32 {v(96+i)}, {v(96+i)}, {v(100+i)}")
    k(f"""v_add_f32 v96, v96, v98
    v_add_f32 v97, v97, v99
    v_add_f32 v96, v96, v97
    v_cvt_pk_bf16_f32 v96, v96, v96
    s_lshl_b32 s79, {s(sWv)}, 10
    s_add_u32 s79, s79, {KVF}
    v_add_u32 v10, s79, {v(vL16)}
    ds_write_b128 v10, v[124:127]
    v_lshlrev_b32 v11, 1, v0
    v_add_u32 v11, {ZF}, v11
    ds_write_b16 v11, v96
    s_waitcnt lgkmcnt(0)
    s_barrier
    v_add_u32 v10, {KVF}, {v(vL16)}
    v_lshrrev_b32 v11, 5, v0
    v_lshlrev_b32 v11, 3, v11
    v_add_u32 v11, {ZF}, v11""")
    KVo, Zo = 16, 32
    for q in range(4): k(f"ds_read_b128 {v(KVo+4*q,4)}, v10 offset:{q*1024}")
    for h in range(2):
        for i in range(2):
            o0 = (h * 64 + 32 * i) // 8
            k(f"ds_read2_b64 {v(Zo+8*h+4*i,4)}, v11 offset0:{o0} offset1:{o0+2}")
    k("s_waitcnt lgkmcnt(0)\ns_barrier")
    wo_dma(k, early=False)
    NUM, DEN = 48, 80
    for h in range(2):
        k(f"{MF32} {v(NUM+16*h,16)}, {v(KVo+8*h,4)}, {v(Pq+8*h,4)}, 0")
        k(f"{MF32} {v(DEN+16*h,16)}, {v(Zo+8*h,4)}, {v(Pq+8*h,4)}, 0")
    for h in range(2):
        k(f"{MF32} {v(NUM+16*h,16)}, {v(KVo+8*h+4,4)}, {v(Pq+8*h+4,4)}, {v(NUM+16*h,16)}")
        k(f"{MF32} {v(DEN+16*h,16)}, {v(Zo+8*h+4,4)}, {v(Pq+8*h+4,4)}, {v(DEN+16*h,16)}")
    for h in range(2):
        k(f"v_add_f32 {v(120+h)}, 0x{EPS6:08x}, {v(DEN+16*h)}")
    for h in range(2): k(f"v_rcp_f32 {v(120+h)}, {v(120+h)}")
    for h in range(2):
        for i in range(16): k(f"v_mul_f32 {v(NUM+16*h+i)}, {v(NUM+16*h+i)}, {v(120+h)}")
    pack(k, 16, NUM, 16)
    k(f"""s_lshl_b32 s79, {s(sR)}, 2
    s_add_u32 s79, s79, {s(sWv)}
    s_lshl_b32 s79, s79, 16
    s_lshl_b32 s80, {s(sG)}, 12
    s_add_u32 s79, s79, s80
    s_lshl_b32 s80, {s(sL)}, 22
    s_add_u32 s79, s79, s80
    s_add_u32 s79, s79, {OB}""")
    for i in range(4):
        k(f"buffer_store_dwordx4 {v(16+4*i,4)}, {v(vL16)}, {WS}, s79 offen offset:{i*1024} sc1")
    k(f"""s_waitcnt vmcnt(0)
    s_barrier
    s_lshl_b32 s79, {s(sL)}, 4
    s_add_u32 s79, s79, {s(sR)}
    s_lshl_b32 s79, s79, 7
    s_add_u32 s82, s79, {FL_S2}
    s_lshl_b32 s80, {s(sG)}, 2
    s_add_u32 s80, s80, s82""")
    signal(k, 80)
    stamp(k, 6)

def wo_dma(k, early):
    for nt in range(2):
        for t in range(4):
            late = nt == 1 and t == 3
            if late == early: continue
            k(f"""s_lshl_b32 s79, {s(sWv)}, 12
            s_add_u32 m0, s79, {nt*65536 + t*16384}
            s_lshl_b32 s80, {s(sG)}, 17
            s_add_u32 s80, s80, {WOP + nt*65536}""")
            k(f"""s_add_u32 s81, {s(G.sSt0)}, {s(sWv)}
            s_add_u32 s81, s81, {4*t}
            s_and_b32 s81, s81, 15
            s_lshl_b32 s81, s81, 12
            s_add_u32 s80, s80, s81""")
            for i in range(4):
                off = f" offset:{i*1024}" if i else ""
                k(f"buffer_load_dwordx4 {v(vL16)}, {WS}, s80 offen{off} sc1 lds")
    if not early:
        k(f"""s_lshl_b32 s79, {s(sWv)}, 13
        s_lshl_b32 s80, {s(sG)}, 15
        s_add_u32 s80, s80, s79
        s_add_u32 s80, s80, {HTAB}""")
        for t in range(2):
            k(f"s_add_u32 m0, s79, {131072 + t*4096}")
            for i in range(4):
                off = f" offset:{i*1024}" if i else ""
                k(f"buffer_load_dwordx4 {v(vL16)}, {WS}, s80 offen{off} sc1 lds")
            if t == 0: k("s_add_u32 s80, s80, 4096")

def rest(k, toks, cfg):
    k("L_LAYER:")
    p1(k, cfg)
    if cfg["stop"] == "p1": return
    import phases2
    phases2.p2(k, cfg)
    if cfg["stop"] == "p2": return
    phases2.p3(k, cfg)
    if cfg["stop"] == "p3": return
    k(f"""s_add_u32 {s(sL)}, {s(sL)}, 1
    s_cmp_eq_u32 {s(sL)}, 1
    s_cbranch_scc1 L_LAYER""")
```

```python
import re

TRANS = ("v_exp_f32", "v_log_f32", "v_rcp_f32", "v_rsq_f32", "v_sqrt_f32", "v_sin_f32", "v_cos_f32")
MFMA_PASSES = {"v_mfma_f32_32x32x16_bf16": 8, "v_mfma_f32_16x16x32_bf16": 4}
RMW_DST = ("v_fmac_f32", "v_dot2c_f32_bf16", "v_writelane_b32", "v_permlane32_swap_b32", "v_permlane16_swap_b32")

_reg_re = re.compile(r"(?<![\w.])(-|abs\()?\b([vas])(\d+)\b|(?<![\w.])([vas])\[(\d+):(\d+)\]")

def regs_of(op):
    op = op.strip()
    out = []
    m = re.fullmatch(r"-?\|?(?:abs\()?([vas])\[(\d+):(\d+)\]\)?\|?", op)
    if m:
        return [(m.group(1), i) for i in range(int(m.group(2)), int(m.group(3)) + 1)]
    m = re.fullmatch(r"-?\|?(?:abs\()?([vas])(\d+)\)?\|?", op)
    if m:
        return [(m.group(1), int(m.group(2)))]
    if op == "vcc": return [("s", 106), ("s", 107)]
    if op == "vcc_lo": return [("s", 106)]
    if op == "exec": return [("s", 126), ("s", 127)]
    if op == "m0": return [("s", 124)]
    return out

class Ins:
    __slots__ = ("text", "op", "w", "r", "kind", "passes", "srcC", "srcAB", "dpp", "label", "target", "storedata", "lds")
    def __init__(self, text):
        self.text = text; self.w = set(); self.r = set(); self.passes = 0; self.srcC = set(); self.srcAB = set()
        self.dpp = False; self.label = None; self.target = None; self.storedata = set(); self.lds = False
        t = text.split(";")[0].strip()
        if not t or t.startswith("."):
            self.kind = "none"; self.op = ""; return
        if t.endswith(":"):
            self.kind = "label"; self.op = ""; self.label = t[:-1]; return
        parts = t.split(None, 1); op = parts[0]; self.op = op
        rest = parts[1] if len(parts) > 1 else ""
        mods = ""
        ops = [o.strip() for o in rest.split(",")] if rest else []
        if ops:
            last = ops[-1].split(None, 1)
            if len(last) > 1:
                ops[-1] = last[0]; mods = last[1]
            elif last and (":" in last[0] and not last[0].startswith(("v[", "a[", "s["))):
                pass
        R = lambda i: set(regs_of(ops[i])) if i < len(ops) else set()
        allr = lambda a: set().union(*[R(i) for i in range(a, len(ops))]) if len(ops) > a else set()
        base = op.replace("_e32", "").replace("_e64", "").replace("_dpp", "")
        if op.startswith("v_mfma"):
            self.kind = "mfma"; self.passes = MFMA_PASSES[op]
            self.w = R(0); self.srcAB = R(1) | R(2); self.srcC = R(3); self.r = self.srcAB | self.srcC
        elif op.startswith("v_"):
            self.kind = "valu"
            self.dpp = ("row_" in mods) or ("quad_perm" in mods) or op.endswith("_dpp")
            if base.startswith("v_cmp"):
                self.w = R(0); self.r = allr(1)
            elif base in ("v_permlane32_swap_b32", "v_permlane16_swap_b32"):
                self.w = R(0) | R(1); self.r = R(0) | R(1)
            elif base.startswith(("v_add_co", "v_sub_co", "v_addc_co")):
                self.w = R(0) | R(1); self.r = allr(2)
            else:
                self.w = R(0); self.r = allr(1)
                if base in RMW_DST: self.r |= R(0)
                if base == "v_cndmask_b32" and len(ops) == 3: self.r |= {("s", 106), ("s", 107)}
        elif op.startswith("ds_"):
            self.kind = "ds"
            if op.startswith("ds_read") or op.startswith("ds_bpermute") or op.startswith("ds_swizzle"):
                self.w = R(0); self.r = allr(1)
                if "d16" in op: self.r |= R(0)
            else:
                self.r = allr(0)
        elif op.startswith("buffer_") or op.startswith("global_"):
            self.kind = "vmem"
            self.lds = " lds" in (" " + mods) or mods.endswith("lds")
            if op.startswith("buffer_load"):
                if self.lds: self.r = allr(0) | {("s", 124)}
                else: self.w = R(0); self.r = allr(1)
            elif op.startswith("buffer_store"):
                self.r = allr(0)
                if op.endswith(("x3", "x4")): self.storedata = R(0)
            elif op.startswith("buffer_atomic"):
                self.r = allr(0)
                if "sc0" in mods: self.w = R(0)
            elif op.startswith("global_load"):
                self.w = R(0); self.r = allr(1)
            elif op.startswith("global_store"):
                self.r = allr(0)
                if op.endswith(("x3", "x4")): self.storedata = R(1)
            elif op in ("buffer_inv", "buffer_wbl2"):
                pass
            else:
                raise ValueError("unclassified vmem: " + text)
        elif op.startswith("s_"):
            self.kind = "salu"
            if op in ("s_branch",) or op.startswith("s_cbranch"):
                self.target = ops[0]
            elif op in ("s_waitcnt", "s_barrier", "s_nop", "s_endpgm", "s_sleep", "s_setprio"):
                pass
            elif op.startswith("s_cmp"):
                self.r = allr(0)
            elif op.startswith(("s_load", "s_memtime", "s_memrealtime")):
                self.w = R(0); self.r = allr(1)
            else:
                self.w = R(0); self.r = allr(1)
                if "saveexec" in op: self.w |= {("s", 126), ("s", 127)}
        else:
            raise ValueError("unclassified: " + text)
    def states(self):
        if self.kind in ("none", "label"): return 0
        if self.op == "s_nop": return int(self.text.split(";")[0].split()[1], 0) + 1
        return 1

def isv(regs): return {x for x in regs if x[0] in "va"}
def iss(regs): return {x for x in regs if x[0] == "s"}

def need(p, c):
    n = 0
    if p.kind == "valu":
        wv = isv(p.w); ws = iss(p.w)
        if wv:
            if c.kind == "valu":
                if c.op.startswith(("v_readfirstlane", "v_readlane")) and wv & c.r: n = max(n, 1)
                if c.op.startswith("v_permlane") and wv & c.r: n = max(n, 2)
                if c.dpp and wv & c.r: n = max(n, 2)
                if p.op.replace("_e32", "").replace("_e64", "") in TRANS and wv & c.r: n = max(n, 1)
            if c.kind == "mfma" and wv & c.r: n = max(n, 2)
        if ws:
            if c.kind == "valu" and ws & c.r: n = max(n, 4 if c.op.startswith(("v_readlane", "v_writelane")) else 2)
            if c.kind == "mfma" and ws & c.r: n = max(n, 4)
            if c.kind == "vmem" and ws & c.r: n = max(n, 5)
            if c.kind == "salu" and ws & c.r: n = max(n, 1)
    if p.kind == "mfma":
        big = p.passes == 8
        if c.kind == "mfma":
            if p.w & c.srcAB: n = max(n, 12 if big else 8)
            if p.w & c.srcC:
                if not (p.w == c.srcC and p.passes == c.passes): n = max(n, 10 if big else 6)
            if p.w & c.w and not (p.w == c.w and p.passes == c.passes and c.srcC == c.w):
                n = max(n, 10 if big else 6)
        elif c.kind in ("valu", "vmem", "ds"):
            if p.w & (c.r | c.w): n = max(n, 12 if big else 8)
            if c.kind == "valu" and p.srcC & c.w: n = max(n, 7 if big else 3)
    if p.kind == "salu" and ("s", 124) in p.w and c.kind == "vmem" and c.lds: n = max(n, 1)
    if p.kind == "vmem" and p.storedata:
        if c.kind == "valu" and p.storedata & c.w: n = max(n, 2)
        elif c.kind in ("mfma", "ds", "vmem") and p.storedata & c.w: n = max(n, 1)
    return n

MAXD = 13
def fix_hazards(lines):
    ins = [Ins(l) for l in lines]
    while True:
        labels = {x.label: i for i, x in enumerate(ins) if x.label}
        jumps = {}
        for i, x in enumerate(ins):
            if x.target is not None: jumps.setdefault(labels[x.target], []).append(i)
        def preds(i):
            out = []
            if i > 0 and ins[i - 1].op not in ("s_branch", "s_endpgm"): out.append(i - 1)
            if ins[i].label and i in jumps: out += jumps[i]
            return out
        pend = {}
        for ci, c in enumerate(ins):
            if c.kind in ("none", "label"): continue
            short = 0
            stack = [(p, 0) for p in preds(ci)]
            seen = {}
            while stack:
                pi, d = stack.pop()
                if d >= MAXD or seen.get(pi, 99) <= d: continue
                seen[pi] = d
                p = ins[pi]
                if p.kind not in ("none", "label"):
                    nn = need(p, c)
                    if nn > d: short = max(short, nn - d)
                nd = d + p.states()
                for q in preds(pi): stack.append((q, nd))
            if short: pend[ci] = short
        if not pend: break
        chosen = {}
        last = -100
        for ci in sorted(pend):
            if ci - last > MAXD + 1:
                chosen[ci] = pend[ci]; last = ci
        new = []
        for ci, c in enumerate(ins):
            if ci in chosen: new.append(Ins("  s_nop %d" % (chosen[ci] - 1)))
            new.append(c)
        ins = new
    return [x.text for x in ins]

class K:
    def __init__(self):
        self.L = []; self.vm = 0; self.lg = 0; self.uid = 0
        self.vm_done = 0; self.lg_done = 0
    def __call__(self, s):
        for line in s.split("\n"):
            t = line.strip()
            if not t: continue
            op = t.split()[0]
            if op.startswith(("buffer_", "global_")) and op not in ("buffer_inv", "buffer_wbl2"):
                if self.vm - self.vm_done >= 62:
                    self.L.append("  s_waitcnt vmcnt(58)"); self.vm_done = self.vm - 58
                self.vm += 1
            elif op.startswith("ds_"):
                if self.lg - self.lg_done >= 15:
                    self.L.append("  s_waitcnt lgkmcnt(12)"); self.lg_done = self.lg - 12
                self.lg += 1
            elif op == "s_waitcnt":
                import re as _re
                m = _re.search(r"vmcnt\((\d+)\)", t)
                if m: self.vm_done = max(self.vm_done, self.vm - int(m.group(1)))
                m = _re.search(r"lgkmcnt\((\d+)\)", t)
                if m: self.lg_done = max(self.lg_done, self.lg - int(m.group(1)))
            self.L.append("  " + t if not t.endswith(":") else t)
        return self
    def raw(self, s):
        for line in s.split("\n"):
            t = line.strip()
            if t: self.L.append("  " + t if not t.endswith(":") else t)
        return self
    def vtok(self): return self.vm
    def ltok(self): return self.lg
    def wait(self, vm=None, lg=None):
        parts = []
        if vm is not None and vm > self.vm_done:
            n = min(self.vm - vm, 62); parts.append("vmcnt(%d)" % n); self.vm_done = self.vm - n
        if lg is not None and lg > self.lg_done:
            n = min(self.lg - lg, 14); parts.append("lgkmcnt(%d)" % n); self.lg_done = self.lg - n
        if parts: self.L.append("  s_waitcnt " + " ".join(parts))
    def save(self): return (self.vm, self.lg, self.vm_done, self.lg_done)
    def restore(self, st): self.vm, self.lg, self.vm_done, self.lg_done = st
    def label(self, base):
        self.uid += 1; return "L_%s_%d" % (base, self.uid)
    def text(self): return "\n".join(fix_hazards(self.L)) + "\n"

def v(i, n=1): return "v%d" % i if n == 1 else "v[%d:%d]" % (i, i + n - 1)
def a(i, n=1): return "a%d" % i if n == 1 else "a[%d:%d]" % (i, i + n - 1)
def s(i, n=1): return "s%d" % i if n == 1 else "s[%d:%d]" % (i, i + n - 1)
```

```python
WS_SIZE = 268435456
NONCE = 0
FL_A0 = 0x1000
FL_S5 = 0x3000
FL_S1 = 0x5000
FL_S2 = 0x9000
FL_P0 = 0xE000
CNT = 0xD000
STAMPS = 0x40000
FTAB = 0x20000
CTAB = 0x28000
HTAB = 0x80000
STX = 0x100000
KVX = 0x200000
KVZ = 0x400000
WOP = 0x600000
HB = 0x800000
XP = 0x1000000
OB = 0x2000000
TB = 0x3000000
```

```python
from asm import K, v, a, s
from layout import *
import gen as G
from gen import (LDS_BYTES, WS, WQ, OUTS, sR, sG, sWv, sNonce, sL, sA0, sWf0, sSt0, vL16, vT, NRING, SLOT, TOP, MF16, LOG2E, EPS6,
                 SEL_LO, SEL_HI, w_dma, w_dma_items, signal, poll16, stamp, ln_tail, f32, sSpin, SPIN_MAX, pack, tree_sum,
                 own_row0, h_flag_addr, sW12, slot_of, wo_gather)

accK, accV, accQ, BR = 16, 48, 80, 112
vTc, vA0 = 144, 252
def acc1(base, ct, rt): return base + 8 * ct + 4 * rt

def xsum16(r, t):
    return [f"v_mov_b32 {v(t)}, {v(r)}", f"v_permlane16_swap_b32 {v(r)}, {v(t)}", f"v_add_f32 {v(r)}, {v(r)}, {v(t)}"]
def xsum32(r, t):
    return [f"v_mov_b32 {v(t)}, {v(r)}", f"v_permlane32_swap_b32 {v(r)}, {v(t)}", f"v_add_f32 {v(r)}, {v(r)}, {v(t)}"]

def phi_items(regs, tmp):
    out = []
    for g0 in range(0, len(regs), 8):
        grp = regs[g0:g0 + 8]
        for i, x in enumerate(grp): out.append(f"v_mul_f32 {v(tmp+i)}, 0x{LOG2E:08x}, {v(x)}")
        for i, x in enumerate(grp): out.append(f"v_exp_f32 {v(tmp+i)}, {v(tmp+i)} clamp")
        for i, x in enumerate(grp): out.append(f"v_add_f32 {v(tmp+i)}, 0x{EPS6:08x}, {v(tmp+i)}")
        for i, x in enumerate(grp): out.append(f"v_add_f32 {v(x)}, {v(x)}, {v(tmp+i)}")
        for i, x in enumerate(grp): out.append(f"v_max_f32 {v(x)}, {v(x)}, {v(tmp+i)}")
    return out

def a_load(j, rt, kap, vbase):
    off = " offset:1024" if kap else ""
    return f"buffer_load_dwordx4 {a(16*j+8*rt+4*kap,4)}, {v(vbase+rt)}, {WS}, {s(sA0+j)} offen{off} sc1"

RED_LO, RED_HI, ZR = 5 * SLOT, TOP, 6 * SLOT
KVF, ZF = TOP, TOP + 4096

def p1(k, cfg):
    tD = {j: k.vtok() for j in range(2)}
    k(f"""s_mul_i32 s80, {s(sL)}, {FL_S5 - FL_A0}
    s_lshl_b32 s79, {s(sR)}, 2
    s_add_u32 s79, s79, {s(sWv)}
    s_lshl_b32 s81, s79, 7
    s_add_u32 s80, s80, s81
    s_add_u32 s80, s80, {FL_A0}
    s_lshl_b32 s79, s79, 16
    s_lshl_b32 s81, {s(sL)}, 22
    s_add_u32 s79, s79, s81
    s_add_u32 s79, s79, {HB}
    v_add_u32 {v(vA0)}, s79, {v(vL16)}
    v_add_u32 {v(vA0+1)}, 0x8000, {v(vA0)}""")
    for c in range(4): k(f"v_mov_b32 {v(vTc+c)}, {v(vT+c)}")
    poll16(k, 80)
    stamp(k, 2)
    tA = {}
    NA0 = cfg.get("na0", 2)
    for j in range(NA0):
        for rt in range(2):
            for kap in range(2): k(a_load(j, rt, kap, vA0))
        tA[j] = k.vtok()
    Ls = k.label("pf")
    k.raw(f"s_cmp_eq_u32 {s(sL)}, 1\ns_cbranch_scc1 {Ls}")
    for j in (2, 3):
        for m0, ld in w_dma_items(j):
            if m0: k.raw(m0)
            k.raw(ld)
    k.raw(f"{Ls}:")
    for j in range(4, 9): tD[j] = w_dma(k, j)
    tD[2] = tD[3] = tD[4]
    vq = []
    for d in range(NA0, 24):
        if d < 16:
            for rt in range(2):
                for kap in range(2): vq.append([("A", d), -1, None, a_load(d, rt, kap, vA0), rt == 1 and kap == 1])
        if d >= NRING:
            for i, (m0, ld) in enumerate(w_dma_items(d)): vq.append([("D", d), 18 if d == 23 else d - NRING + 2, m0, ld, i == 3])
    k(f"""s_lshl_b32 s76, {s(sG)}, 17
    s_lshl_b32 s75, {s(sWv)}, 15
    s_add_u32 s76, s76, s75
    s_add_u32 s76, s76, {WOP}""")
    for sg, rel in ((0, 20), (1, 21), (4, 21), (5, 21), (2, 22), (3, 23)):
        for pre, ld in wo_dma_items(sg): vq.append([("O", sg), rel, pre, ld, False])
    groups = []
    for j in range(16):
        for part, base in ((0, accK), (1, accV)):
            for ct in range(4): groups.append((j, base, ct, j, part * 2048, False))
    for jj in range(8):
        for sh in range(2):
            for ct in range(4): groups.append((16 + jj, accQ, ct, 2 * jj + sh, sh * 2048, True))
    NG = len(groups)
    PF = 3
    tR = {}
    synced = set()
    def reads(g):
        st, base, ct, pj, off, isq = groups[g]
        b = BR + 8 * (g % 4)
        ad = vTc + 4 * (st & 1) + ct
        out = []
        for kap in range(2):
            out.append(f"ds_read_b64_tr_b16 {v(b+4*kap,2)}, {v(ad)} offset:{off + kap*8192}")
            out.append(f"ds_read_b64_tr_b16 {v(b+4*kap+2,2)}, {v(ad)} offset:{off + kap*8192 + 512}")
        return out
    def Y(j):
        assert j in tD, "W stage %d not issued before its sync" % j
        k.wait(vm=tD[j])
        if not cfg.get("nobar"): k("s_barrier")
        synced.add(j)
    def vnext():
        for it in vq:
            if it[1] in synced or it[1] < 0: return it
        return None
    fill = p1_fill(k, cfg)
    synced.add(0)
    k.wait(vm=tD[0])
    k("s_barrier")
    Lg = k.label("wog")
    k.raw(f"s_cmp_lg_u32 {s(sL)}, 0\ns_cbranch_scc1 {Lg}")
    wo_gather(k)
    k.raw(f"{Lg}:")
    for g in range(PF):
        for r in reads(g): k(r)
        tR[g] = k.ltok()
    rate = cfg.get("vrate", [1, 1, 1, 0, 1, 1, 1, 0])
    frate = cfg.get("frate", 6)
    for g in range(NG):
        st, base, ct, pj, off, isq = groups[g]
        CUR[0] = g
        if g == 128: stamp(k, 4)
        if g == 24:
            Lq = k.label("p0f")
            k.raw(f"""s_cmp_lg_u32 {s(sWv)}, 0
            s_cbranch_scc1 {Lq}
            s_lshl_b32 s79, s2, 2
            s_add_u32 s79, s79, {FL_P0}
            v_mov_b32 v10, {s(sNonce)}
            v_mov_b32 v11, 0
            s_mov_b64 exec, 1
            buffer_store_dword v10, v11, {WS}, s79 offen sc1
            s_mov_b64 exec, -1
            {Lq}:""")
        if g == 140:
            k(f"s_mov_b32 s74, {FL_P0}\nbuffer_load_dwordx4 v[244:247], {v(vL16)}, {WS}, s74 offen sc1")
            tP0 = k.vtok()
        if g == 156:
            Lq = k.label("p0w")
            k.wait(vm=tP0)
            k.raw(f"""s_mov_b32 {s(sSpin)}, {SPIN_MAX}
            {Lq}:
            v_xor_b32 v244, {s(sNonce)}, v244
            v_xor_b32 v245, {s(sNonce)}, v245
            v_xor_b32 v246, {s(sNonce)}, v246
            v_xor_b32 v247, {s(sNonce)}, v247
            v_or3_b32 v244, v244, v245, v246
            v_or_b32 v244, v244, v247
            v_cmp_ne_u32 vcc, 0, v244
            s_cbranch_vccz {Lq}_ok
            buffer_load_dwordx4 v[244:247], {v(vL16)}, {WS}, s74 offen sc1
            s_waitcnt vmcnt(0)
            s_sub_u32 {s(sSpin)}, {s(sSpin)}, 1
            s_cmp_lg_u32 {s(sSpin)}, 0
            s_cbranch_scc1 {Lq}
            {Lq}_ok:""")
        if g == cfg.get("gst", -1): stamp(k, 15)
        b = BR + 8 * (g % 4)
        if g < 128 and g % 8 == 0: k.wait(vm=tA[pj])
        k.wait(lg=tR[g])
        rd = reads(g + PF) if g + PF < NG else []
        first = (g < 8) if not isq else (g < 132)
        it = vnext() if rate[g % len(rate)] else None
        n = 0
        for rt in range(2):
            for kap in range(2):
                ac = acc1(base, ct, rt)
                c = "0" if (first and kap == 0) else v(ac, 4)
                fa = a(16 * pj + 8 * rt + 4 * kap, 4)
                if isq: k(f"{MF16} {v(ac,4)}, {v(b+4*kap,4)}, {fa}, {c}")
                else: k(f"{MF16} {v(ac,4)}, {fa}, {v(b+4*kap,4)}, {c}")
                if n == 0 and g + PF < NG and (g + PF) % 8 == 0: Y((g + PF) // 8)
                if rd and not cfg.get("notr"): k(rd[n])
                if n == 0 and it and it[2] and not cfg.get("no" + it[0][0]): k(it[2])
                if n == 1 and it:
                    if not cfg.get("no" + it[0][0]): k(it[3])
                    vq.remove(it)
                    if it[4]: (tA if it[0][0] == "A" else tD)[it[0][1]] = k.vtok()
                if n == 2 and g % 8 < 4 and st + 1 < 24:
                    cc = g % 8
                    k(f"v_add_u32 {v(vTc+4*((st+1)&1)+cc)}, {slot_of(st+1) * SLOT}, {v(vT+cc)}")
                if g >= 128:
                    for _ in range(frate):
                        if fill: fill.pop(0)()
                n += 1
        if g + PF < NG: tR[g + PF] = k.ltok()
    for it in list(vq):
        assert it[1] in synced and it[0][0] == "O", it
        if it[2]: k(it[2])
        k(it[3])
    while fill: fill.pop(0)()
    stamp(k, 3)
    p1_tail(k, cfg)

CUR = [0]
def check_group(n): assert CUR[0] >= n, "scratch slots still in use by the ring (group %d)" % CUR[0]

def p1_fill(k, cfg):
    F = []
    def I(txt): F.append(lambda t=txt: k(t))
    Pk, Pv, KVa, Zt, One, tmp = 152, 168, 184, 216, 232, 236
    for i in range(4): I(f"v_mov_b32 {v(One+i)}, 0x3f803f80")
    for ct in range(4):
        for t in phi_items(list(range(accK + 8 * ct, accK + 8 * ct + 8)), tmp): I(t)
        for i in range(4): I(f"v_cvt_pk_bf16_f32 {v(Pk+4*ct+i)}, {v(accK+8*ct+2*i)}, {v(accK+8*ct+2*i+1)}")
        for i in range(4): I(f"v_cvt_pk_bf16_f32 {v(Pv+4*ct+i)}, {v(accV+8*ct+2*i)}, {v(accV+8*ct+2*i+1)}")
    I(f"""s_and_b32 s79, {s(sWv)}, 1
    s_lshl_b32 s79, s79, 13
    s_lshr_b32 s80, {s(sWv)}, 1
    s_mul_i32 s80, s80, {RED_HI - RED_LO}
    s_add_u32 s79, s79, s80
    s_add_u32 s79, s79, {RED_LO}""")
    I(f"v_add_u32 v10, s79, {v(vL16)}")
    I(f"v_lshrrev_b32 v11, 4, v0")
    I(f"s_lshl_b32 s79, {s(sWv)}, 8\ns_add_u32 s79, s79, {ZR}")
    I(f"v_lshl_add_u32 v11, v11, 4, s79")
    for h in range(2):
        for eh in range(2):
            for dh in range(2):
                I(f"{MF16} {v(KVa+16*h+8*eh+4*dh,4)}, {v(Pk+4*(2*h+dh),4)}, {v(Pv+4*(2*h+eh),4)}, 0")
    for ct in range(4): I(f"{MF16} {v(Zt+4*ct,4)}, {v(Pk+4*ct,4)}, {v(One,4)}, 0")
    I(f"s_lshl_b32 s79, {s(sWv)}, 11")
    I(f"v_add_u32 v14, s79, {v(vL16)}")
    F.append(lambda: check_group(133))
    for q in range(8): I(f"ds_write_b128 v10, {v(KVa+4*q,4)} offset:{q*1024}")
    def zw():
        k("s_mov_b32 exec_lo, 0x00010001\ns_mov_b32 exec_hi, 0x00010001")
        for ct in range(4): k(f"ds_write_b128 v11, {v(Zt+4*ct,4)} offset:{ct*64}")
        k("s_mov_b64 exec, -1")
        st["w"] = k.ltok()
    st = {}
    F.append(zw)
    I(f"v_and_b32 v11, 15, v0")
    I(f"v_lshlrev_b32 v11, 2, v11")
    I(f"s_lshl_b32 s79, {s(sWv)}, 6\ns_add_u32 s79, s79, {ZR}")
    I(f"v_add_u32 v12, s79, v11")
    for _ in range(cfg.get("bargap", 12)): F.append(lambda: None)
    def bar():
        k.wait(lg=st["w"]); k("s_barrier")
    if cfg.get("fst") == 0: F.append(lambda: stamp(k, 15))
    F.append(bar)
    R = 16
    for w in range(4):
        base = (RED_LO if w < 2 else RED_HI) + (w & 1) * 8192
        I(f"v_add_u32 v13, {base}, v14")
        for q in range(2): I(f"ds_read_b128 {v(R+8*w+4*q,4)}, v13 offset:{q*1024}")
        I(f"ds_read_b32 {v(48+w)}, v12 offset:{w*256}")
    F.append(lambda: st.__setitem__("r", k.ltok()))
    for _ in range(cfg.get("rdgap", 12)): F.append(lambda: None)
    F.append(lambda: k.wait(lg=st["r"]))
    for i in range(8):
        I(f"v_add_f32 {v(R+i)}, {v(R+i)}, {v(R+8+i)}"); I(f"v_add_f32 {v(R+16+i)}, {v(R+16+i)}, {v(R+24+i)}")
    I("v_add_f32 v48, v48, v49"); I("v_add_f32 v50, v50, v51")
    for i in range(8): I(f"v_add_f32 {v(R+i)}, {v(R+i)}, {v(R+16+i)}")
    I("v_add_f32 v48, v48, v50")
    for i in range(4): I(f"v_cvt_pk_bf16_f32 {v(R+8+i)}, {v(R+2*i)}, {v(R+2*i+1)}")
    def publish():
        k(f"""s_lshl_b32 s79, {s(sG)}, 4
        s_add_u32 s79, s79, {s(sR)}
        s_lshl_b32 s80, s79, 8
        s_lshl_b32 s81, {s(sL)}, 16
        s_add_u32 s80, s80, s81
        s_lshl_b32 s81, {s(sWv)}, 6
        s_add_u32 s80, s80, s81
        s_add_u32 s80, s80, {KVZ}
        s_mov_b64 exec, 0xffff
        buffer_store_dword v48, v11, {WS}, s80 offen sc1
        s_mov_b64 exec, -1
        s_lshl_b32 s80, s79, 12
        s_lshl_b32 s81, {s(sWv)}, 10
        s_add_u32 s80, s80, s81
        s_lshl_b32 s81, {s(sL)}, 20
        s_add_u32 s80, s80, s81
        s_add_u32 s80, s80, {KVX}
        buffer_store_dwordx4 {v(R+8,4)}, {v(vL16)}, {WS}, s80 offen sc1""")
        st["t"] = k.vtok()
        k(f"""s_lshl_b32 s79, {s(sL)}, 4
        s_add_u32 s79, s79, {s(sG)}
        s_lshl_b32 s79, s79, 2
        s_add_u32 s79, s79, {s(sWv)}
        s_lshl_b32 s79, s79, 7
        s_add_u32 s82, s79, {FL_S1}
        s_lshl_b32 s83, {s(sR)}, 2
        s_add_u32 s83, s83, s82""")
    if cfg.get("fst") == 1: F.append(lambda: stamp(k, 15))
    F.append(publish)
    for _ in range(cfg.get("s1gap", 400)): F.append(lambda: None)
    def sig():
        k.wait(vm=st["t"])
        signal(k, 83)
    if cfg.get("fst") == 2: F.append(lambda: stamp(k, 15))
    F.append(sig)
    if cfg.get("fst") == 3: F.append(lambda: stamp(k, 15))
    return F

WO_SLOT = [0, 1, 2, 3, 5, 6, 4, 7]
def wo_dma_items(sg):
    out = []
    for jj in range(2):
        out.append((f"""s_add_u32 m0, {s(sW12)}, {WO_SLOT[sg]*SLOT + jj*2048}
        s_add_u32 s77, s76, {s(sA0+2*sg+jj)}""", f"buffer_load_dwordx4 {v(vL16)}, {WS}, s77 offen sc1 lds"))
        out.append((None, f"buffer_load_dwordx4 {v(vL16)}, {WS}, s77 offen offset:1024 sc1 lds"))
    return out

def p1_tail(k, cfg):
    Pq, tmp, S = 152, 236, 112
    k("s_barrier")
    poll16(k, 82)
    stamp(k, 5)
    k(f"""s_lshl_b32 s80, {s(sG)}, 16
    s_lshl_b32 s81, {s(sWv)}, 10
    s_add_u32 s80, s80, s81
    s_lshl_b32 s81, {s(sL)}, 20
    s_add_u32 s80, s80, s81
    s_add_u32 s80, s80, {KVX}""")
    toks = []
    for r in range(16):
        k(f"buffer_load_dwordx4 {v(16+4*r,4)}, {v(vL16)}, {WS}, s80 offen sc1")
        toks.append(k.vtok())
        if r < 15: k("s_add_u32 s80, s80, 4096")
    k(f"""s_lshl_b32 s80, {s(sG)}, 12
    s_lshl_b32 s81, {s(sL)}, 16
    s_add_u32 s80, s80, s81
    s_lshl_b32 s81, {s(sWv)}, 6
    s_add_u32 s80, s80, s81
    s_add_u32 s80, s80, {KVZ}
    v_lshrrev_b32 v11, 2, v0
    v_lshlrev_b32 v11, 8, v11
    v_and_b32 v12, 3, v0
    v_lshl_add_u32 v11, v12, 4, v11
    buffer_load_dwordx4 v[168:171], v11, {WS}, s80 offen sc1""")
    tz = k.vtok()
    stamp(k, "t_ld")
    wq = []
    for sg in (6, 7):
        for pre, ld in wo_dma_items(sg): wq.append((pre + "\n" if pre else "") + ld)
    cnt = [0]
    def paced(txt, every):
        k(txt); cnt[0] += 1
        if cnt[0] % every == 0 and wq: k(wq.pop(0))
    for t in phi_items(list(range(accQ, accQ + 32)), tmp): paced(t, 8)
    for h in range(2):
        for rt in range(2):
            for dh in range(2):
                x = acc1(accQ, 2 * h + dh, rt)
                for i in range(2):
                    paced(f"v_cvt_pk_bf16_f32 {v(Pq+8*h+4*rt+2*dh+i)}, {v(x+2*i)}, {v(x+2*i+1)}", 8)
    stamp(k, "t_phi")
    k(f"v_mov_b32 v120, 0x{SEL_LO:08x}\nv_mov_b32 v121, 0x{SEL_HI:08x}")
    for i in range(8): k(f"v_mov_b32 {v(S+i)}, 0")
    for r in range(16):
        k.wait(vm=toks[r])
        for i in range(4):
            paced(f"v_dot2_f32_bf16 {v(S+2*i)}, {v(16+4*r+i)}, v120, {v(S+2*i)}", 8)
            paced(f"v_dot2_f32_bf16 {v(S+2*i+1)}, {v(16+4*r+i)}, v121, {v(S+2*i+1)}", 8)
    pack(k, 124, S, 4)
    stamp(k, "t_dot")
    k.wait(vm=tz)
    for sh in (4, 8):
        for i in range(4):
            k(f"v_add_f32_dpp {v(172+i)}, {v(168+i)}, {v(168+i)} row_ror:{sh} row_mask:0xf bank_mask:0xf")
        for i in range(4): k(f"v_mov_b32 {v(168+i)}, {v(172+i)}")
    for fn in (xsum16, xsum32):
        seq = [fn(168 + i, 172 + i) for i in range(4)]
        for t in range(3):
            for i in range(4): k(seq[i][t])
    k(f"""v_cvt_pk_bf16_f32 v96, v168, v169
    v_cvt_pk_bf16_f32 v97, v170, v171
    s_lshl_b32 s79, {s(sWv)}, 10
    s_add_u32 s79, s79, {KVF}
    v_add_u32 v10, s79, {v(vL16)}
    ds_write_b128 v10, v[124:127]
    v_lshlrev_b32 v11, 3, v0
    s_lshl_b32 s79, {s(sWv)}, 5
    s_add_u32 s79, s79, {ZF}
    v_add_u32 v11, s79, v11
    s_mov_b64 exec, 15
    ds_write_b64 v11, v[96:97]
    s_mov_b64 exec, -1""")
    while wq: k(wq.pop(0))
    k(f"""s_waitcnt lgkmcnt(0)
    s_barrier
    v_add_u32 v10, {KVF}, {v(vL16)}
    v_lshrrev_b32 v11, 4, v0
    v_lshlrev_b32 v11, 3, v11
    v_add_u32 v11, {ZF}, v11""")
    stamp(k, "t_lds")
    KVo, Zo = 16, 32
    for q in range(4): k(f"ds_read_b128 {v(KVo+4*q,4)}, v10 offset:{q*1024}")
    for h in range(2): k(f"ds_read2_b64 {v(Zo+4*h,4)}, v11 offset0:{h*8} offset1:{h*8+4}")
    k("s_waitcnt lgkmcnt(0)")
    NUM, DEN = 48, 80
    for h in range(2):
        for rt in range(2):
            pq = v(Pq + 8 * h + 4 * rt, 4)
            k(f"{MF16} {v(DEN+4*(2*h+rt),4)}, {v(Zo+4*h,4)}, {pq}, 0")
            for eh in range(2):
                k(f"{MF16} {v(NUM+16*h+8*rt+4*eh,4)}, {v(KVo+8*h+4*eh,4)}, {pq}, 0")
    for i in range(4): k(f"v_add_f32 {v(120+i)}, 0x{EPS6:08x}, {v(DEN+4*i)}")
    for i in range(4): k(f"v_rcp_f32 {v(120+i)}, {v(120+i)}")
    for i in range(4):
        for r in range(8): k(f"v_mul_f32 {v(NUM+8*i+r)}, {v(NUM+8*i+r)}, {v(120+i)}")
    pack(k, 16, NUM, 16)
    k(f"""s_lshl_b32 s79, {s(sR)}, 2
    s_add_u32 s79, s79, {s(sWv)}
    s_lshl_b32 s79, s79, 16
    s_lshl_b32 s80, {s(sG)}, 11
    s_add_u32 s79, s79, s80
    s_lshl_b32 s80, {s(sL)}, 22
    s_add_u32 s79, s79, s80
    s_add_u32 s79, s79, {OB}
    s_add_u32 s80, s79, 0x8000""")
    for h in range(2):
        for rt in range(2):
            off = " offset:1024" if h else ""
            k(f"buffer_store_dwordx4 {v(16+8*h+4*rt,4)}, {v(vL16)}, {WS}, s{79+rt} offen{off} sc1")
    stamp(k, "t_o")
    k(f"""s_lshl_b32 s79, {s(sL)}, 4
    s_add_u32 s79, s79, {s(sR)}
    s_lshl_b32 s79, s79, 2
    s_add_u32 s79, s79, {s(sWv)}
    s_lshl_b32 s79, s79, 7
    s_add_u32 s82, s79, {FL_S2}
    s_lshl_b32 s80, {s(sG)}, 2
    s_add_u32 s80, s80, s82
    s_waitcnt vmcnt(0)""")
    signal(k, 80)
    k("s_barrier")
    stamp(k, 6)

def p2(k, cfg):
    vBb, vBh = 248, 144
    BR2 = 112
    k(f"""s_lshl_b32 s79, {s(sWv)}, 13
    s_lshl_b32 s80, {s(sG)}, 15
    s_add_u32 s80, s80, s79
    s_add_u32 s80, s80, {HTAB}""")
    for t in range(2):
        k(f"s_add_u32 m0, s79, {131072 + t*4096}")
        for i in range(4):
            off = f" offset:{i*1024}" if i else ""
            k(f"buffer_load_dwordx4 {v(vL16)}, {WS}, s80 offen{off} sc1 lds")
        if t == 0: k("s_add_u32 s80, s80, 4096")
    poll16(k, 82)
    stamp(k, 7)
    k(f"""s_lshl_b32 s79, {s(sR)}, 2
    s_add_u32 s79, s79, {s(sWv)}
    s_lshl_b32 s79, s79, 16
    s_lshl_b32 s80, {s(sL)}, 22
    s_add_u32 s79, s79, s80
    s_add_u32 s79, s79, {OB}
    v_add_u32 {v(vA0)}, s79, {v(vL16)}
    v_add_u32 {v(vA0+1)}, 0x8000, {v(vA0)}""")
    tA = {}
    NA0 = cfg.get("nb0", 4)
    for j in range(NA0):
        for rt in range(2):
            for kap in range(2): k(a_load(j, rt, kap, vA0))
        tA[j] = k.vtok()
    for c in range(4):
        k(f"v_add_u32 {v(vBb+c)}, {c*4096}, {v(vL16)}")
        k(f"v_add_u32 {v(vBh+c)}, {c*4096 + 65536}, {v(vL16)}")
    vq = []
    for j in range(NA0, 16):
        for rt in range(2):
            for kap in range(2): vq.append((("A", j), a_load(j, rt, kap, vA0), rt == 1 and kap == 1))
    vRES, vF = 232, 152
    res_setup = f"""v_and_b32 v10, 15, v0
    v_lshlrev_b32 v10, 11, v10
    v_lshrrev_b32 v11, 4, v0
    v_lshl_add_u32 v10, v11, 5, v10
    s_lshl_b32 s79, {s(sR)}, 2
    s_add_u32 s79, s79, {s(sWv)}
    s_lshl_b32 s79, s79, 16
    s_lshl_b32 s80, {s(sG)}, 7
    s_add_u32 s79, s79, s80
    s_lshl_b32 s80, {s(sL)}, 23
    s_add_u32 s79, s79, s80
    s_add_u32 s84, s79, {XP}
    s_add_u32 s85, s84, 0x8000
    s_lshl_b32 s79, {s(sWv)}, 13
    s_add_u32 s86, s79, {FTAB}
    s_add_u32 s87, s86, 4096"""
    k(res_setup)
    for rt in range(2):
        for h in range(2):
            off = " offset:16" if h else ""
            vq.append((("R", 0), f"buffer_load_dwordx4 {v(vRES+8*rt+4*h,4)}, v10, {WS}, s{84+rt} offen{off} sc1", rt == 1 and h == 1))
    for f in range(8):
        off = f" offset:{(f&3)*1024}" if f & 3 else ""
        vq.append((("F", 0), f"buffer_load_dwordx4 {v(vF+4*f,4)}, {v(vL16)}, {WS}, s{86+(f>>2)} offen{off} sc1", f == 7))
    tk = {}
    def vissue():
        nm, txt, last = vq.pop(0)
        k(txt)
        if last:
            if nm[0] == "A": tA[nm[1]] = k.vtok()
            else: tk[nm[0]] = k.vtok()
    acc = 16
    groups = [(j, ct) for j in range(16) for ct in range(4)]
    NG, PF = len(groups), 3
    tR = {}
    def reads(g):
        j, ct = groups[g]
        b = BR2 + 8 * (g % 4)
        off = WO_SLOT[j >> 1] * SLOT + (j & 1) * 2048
        base = vBb if off + 1024 < 65536 else vBh
        if off + 1024 >= 65536: off -= 65536
        return [f"ds_read_b128 {v(b+4*kap,4)}, {v(base+ct)} offset:{off + kap*1024}" for kap in range(2)]
    BRn = 4
    for g in range(PF):
        for r in reads(g): k(r)
        tR[g] = k.ltok()
    for g in range(NG):
        j, ct = groups[g]
        b = BR2 + 8 * (g % 4)
        if ct == 0: k.wait(vm=tA[j])
        k.wait(lg=tR[g])
        rd = reads(g + PF) if g + PF < NG else []
        n = 0
        for rt in range(2):
            for kap in range(2):
                ac = acc + 16 * rt + 4 * ct
                c = "0" if (j == 0 and kap == 0) else v(ac, 4)
                k(f"{MF16} {v(ac,4)}, {v(b+4*kap,4)}, {a(16*j+8*rt+4*kap,4)}, {c}")
                if n < 2 and rd: k(rd[n])
                if n == 2 and vq: vissue()
                n += 1
        if g + PF < NG: tR[g + PF] = k.ltok()
    while vq: vissue()
    stamp(k, 8)
    k("s_barrier")
    k(f"v_mov_b32 v10, 0x{SEL_LO:08x}\nv_mov_b32 v11, 0x{SEL_HI:08x}")
    k.wait(vm=tk["R"])
    for nn in range(32):
        k(f"v_dot2_f32_bf16 {v(acc+nn)}, {v(vRES+(nn>>1))}, {v(10+(nn&1))}, {v(acc+nn)}")
    vS, vMu, vM2, vTm = 64, 66, 68, 72
    for rt in range(2): tree_sum(k, vS + rt, range(acc + 16 * rt, acc + 16 * rt + 16), 80 + 8 * rt)
    for fn in (xsum16, xsum32):
        seq = [fn(vS + rt, vTm + rt) for rt in range(2)]
        for i in range(3):
            for rt in range(2): k(seq[rt][i])
    for rt in range(2): k(f"v_mul_f32 {v(vMu+rt)}, 0x{f32(1/64):08x}, {v(vS+rt)}")
    for rt in range(2):
        for i in range(16): k(f"v_sub_f32 {v(80+16*rt+i)}, {v(acc+16*rt+i)}, {v(vMu+rt)}")
    for rt in range(2):
        d = 80 + 16 * rt
        for c in range(4): k(f"v_mul_f32 {v(112+4*rt+c)}, {v(d+c)}, {v(d+c)}")
        for i in range(4, 16): k(f"v_fmac_f32 {v(112+4*rt+(i&3))}, {v(d+i)}, {v(d+i)}")
        tree_sum(k, vM2 + rt, range(112 + 4 * rt, 116 + 4 * rt), 120 + 2 * rt)
    for fn in (xsum16, xsum32):
        seq = [fn(vM2 + rt, vTm + rt) for rt in range(2)]
        for i in range(3):
            for rt in range(2): k(seq[rt][i])
    stamp(k, "e_st")
    k(f"""v_cmp_lt_u32 vcc, 15, v0
    v_cndmask_b32 v76, {v(vMu)}, {v(vMu+1)}, vcc
    v_cndmask_b32 v77, {v(vM2)}, {v(vM2+1)}, vcc
    v_mov_b32 v78, {s(sNonce)}
    v_mov_b32 v79, {s(sNonce)}
    v_and_b32 v12, 31, v0
    v_lshlrev_b32 v12, 4, v12
    s_lshl_b32 s79, {s(sWv)}, 9
    v_add_u32 v12, s79, v12
    s_lshl_b32 s79, {s(sR)}, 15
    s_lshl_b32 s84, {s(sL)}, 19
    s_add_u32 s84, s84, s79
    s_add_u32 s84, s84, {STX}
    s_lshl_b32 s79, {s(sG)}, 11
    s_add_u32 s79, s79, s84
    s_mov_b32 exec_hi, 0
    buffer_store_dwordx4 v[76:79], v12, {WS}, s79 offen sc1
    s_mov_b64 exec, -1""")
    vP = 48
    pack(k, vP, acc, 16)
    k(f"""v_and_b32 v10, 15, v0
    v_lshrrev_b32 v11, 4, v0
    v_lshlrev_b32 v11, 1, v11
    v_and_b32 v12, 7, v0
    v_xor_b32 v11, v11, v12
    v_lshlrev_b32 v11, 4, v11
    v_lshl_add_u32 v10, v10, 7, v11
    s_lshl_b32 s79, {s(sWv)}, 12
    v_add_u32 v10, s79, v10
    v_xor_b32 v11, 16, v10""")
    for rt in range(2):
        k(f"ds_write_b128 v10, {v(vP+8*rt,4)} offset:{rt*2048}")
        k(f"ds_write_b128 v11, {v(vP+8*rt+4,4)} offset:{rt*2048}")
    k(f"""s_lshl_b32 s79, {s(sWv)}, 12
    v_add_u32 v11, s79, {v(vL16)}""")
    for t in range(4): k(f"ds_read_b128 {v(80+4*t,4)}, v11 offset:{t*1024}")
    tX = k.ltok()
    Lp = k.label("stat")
    vG = 96
    k(f"""v_and_b32 v13, 15, v0
    v_lshrrev_b32 v12, 5, v0
    v_lshl_add_u32 v13, v12, 4, v13
    v_lshlrev_b32 v13, 4, v13
    v_bfe_u32 v12, v0, 4, 1
    v_lshl_add_u32 v13, v12, 14, v13
    s_lshl_b32 s79, {s(sWv)}, 9
    v_add_u32 v13, s79, v13
    s_add_u32 s85, s84, 4096
    s_add_u32 s86, s84, 8192
    s_add_u32 s87, s84, 12288
    v_lshrrev_b32 v11, 3, v0
    v_and_b32 v12, 7, v0
    v_xor_b32 v12, v12, v11
    v_lshlrev_b32 v12, 4, v12
    v_lshl_add_u32 v11, v11, 11, v12
    s_lshl_b32 s79, {s(sR)}, 2
    s_add_u32 s79, s79, {s(sWv)}
    s_lshl_b32 s79, s79, 16
    s_lshl_b32 s80, {s(sG)}, 7
    s_add_u32 s79, s79, s80
    s_lshl_b32 s80, {s(sL)}, 23
    s_add_u32 s79, s79, s80
    s_add_u32 s79, s79, {XP + 0x400000}""")
    stamp(k, "e_pre")
    k.raw(f"s_mov_b32 {s(sSpin)}, {SPIN_MAX}\n{Lp}:")
    for i in range(8):
        off = " offset:2048" if i & 1 else ""
        k.raw(f"buffer_load_dwordx4 {v(vG+4*i,4)}, v13, {WS}, s{84+(i>>1)} offen{off} sc1")
    k.raw("s_waitcnt vmcnt(0)")
    for i in range(8): k.raw(f"v_xor_b32 {v(vG+4*i+2)}, {s(sNonce)}, {v(vG+4*i+2)}")
    k.raw(f"""v_or3_b32 v10, {v(vG+2)}, {v(vG+6)}, {v(vG+10)}
    v_or3_b32 v12, {v(vG+14)}, {v(vG+18)}, {v(vG+22)}
    v_or3_b32 v10, v10, {v(vG+26)}, {v(vG+30)}
    v_or_b32 v10, v10, v12
    v_cmp_ne_u32 vcc, 0, v10
    s_cbranch_vccz {Lp}_done
    s_sub_u32 {s(sSpin)}, {s(sSpin)}, 1
    s_cmp_lg_u32 {s(sSpin)}, 0
    s_cbranch_scc1 {Lp}
    {Lp}_done:""")
    k.vm_done = k.vm
    stamp(k, 10)
    k.wait(lg=tX)
    for t in range(4):
        k(f"buffer_store_dwordx4 {v(80+4*t,4)}, v11, {WS}, s79 offen sc1")
        if t < 3: k("s_add_u32 s79, s79, 16384")
    vMean, vV, vD = 64, 65, 66
    tree_sum(k, vMean, [vG + 4 * i for i in range(8)], 68)
    tree_sum(k, vV, [vG + 4 * i + 1 for i in range(8)], 72)
    for t in xsum16(vMean, 67): k(t)
    k(f"v_mul_f32 {v(vMean)}, 0x{f32(1/16):08x}, {v(vMean)}")
    for i in range(8): k(f"v_sub_f32 {v(vG+4*i)}, {v(vG+4*i)}, {v(vMean)}")
    k(f"v_mul_f32 {v(vD)}, {v(vG)}, {v(vG)}\nv_mul_f32 v67, {v(vG+4)}, {v(vG+4)}")
    for i in range(2, 8): k(f"v_fmac_f32 {v(vD+(i&1))}, {v(vG+4*i)}, {v(vG+4*i)}")
    k(f"""v_add_f32 {v(vD)}, {v(vD)}, v67
    v_fmac_f32 {v(vV)}, 0x{f32(64.0):08x}, {v(vD)}""")
    for t in xsum16(vV, 67): k(t)
    k(f"""v_mov_b32 v67, 0x{f32(1e-5):08x}
    v_fmac_f32 v67, 0x{f32(1/1024):08x}, {v(vV)}
    v_rsq_f32 v68, v67
    s_nop 0
    v_mul_f32 v69, {v(vMean)}, v68
    v_mov_b32 v70, v68
    v_mov_b32 v71, v69
    s_nop 1
    v_permlane32_swap_b32 v68, v70
    v_permlane32_swap_b32 v69, v71""")
    for rt in range(2):
        for i in range(16):
            k(f"v_fma_f32 {v(acc+16*rt+i)}, {v(acc+16*rt+i)}, {v(68+2*rt)}, -{v(69+2*rt)}")
    pack(k, vP, acc, 16)
    HT = 16384
    k(f"""v_and_b32 v10, 15, v0
    v_bfe_u32 v11, v0, 1, 1
    v_bfe_u32 v12, v0, 3, 1
    v_lshl_add_u32 v11, v12, 1, v11
    v_lshlrev_b32 v11, 1, v11
    v_bfe_u32 v12, v0, 2, 1
    v_xor_b32 v11, v11, v12
    v_lshrrev_b32 v12, 4, v0
    v_lshlrev_b32 v12, 1, v12
    v_xor_b32 v11, v11, v12
    v_lshlrev_b32 v11, 4, v11
    v_lshl_add_u32 v10, v10, 7, v11
    s_lshl_b32 s79, {s(sWv)}, 12
    s_add_u32 s79, s79, {HT}
    v_add_u32 v10, s79, v10
    v_xor_b32 v11, 16, v10""")
    for rt in range(2):
        k(f"ds_write_b128 v10, {v(vP+8*rt,4)} offset:{rt*2048}")
        k(f"ds_write_b128 v11, {v(vP+8*rt+4,4)} offset:{rt*2048}")
    vTA = 224
    k(f"""v_lshrrev_b32 v10, 4, v0
    v_bfe_u32 v11, v0, 2, 2
    v_lshl_add_u32 v12, v10, 3, v11
    v_lshlrev_b32 v12, 7, v12
    v_lshrrev_b32 v11, 1, v11
    v_and_b32 v10, 1, v10
    v_lshl_add_u32 v11, v10, 1, v11
    v_lshlrev_b32 v11, 1, v11
    v_bfe_u32 v10, v0, 1, 1
    v_xor_b32 v11, v11, v10
    v_lshl_add_u32 v12, v11, 4, v12
    v_and_b32 v10, 1, v0
    v_lshl_add_u32 v12, v10, 3, v12
    v_add_u32 v12, {HT}, v12""")
    for d in range(4):
        k(f"v_xor_b32 {v(vTA+2*d)}, {32*d}, v12")
        k(f"v_xor_b32 {v(vTA+2*d+1)}, {32*d+16}, v12")
        k(f"v_add_u32 {v(vTA+2*d+1)}, 512, {v(vTA+2*d+1)}")
    k("s_waitcnt lgkmcnt(0)\ns_barrier")
    stamp(k, 9)
    Z = 184
    frs = [(kap, d) for kap in range(4) for d in range(4)]
    tH = {}
    def hread(f):
        kap, d = frs[f]
        r = 48 + 4 * (f % 8)
        k(f"ds_read_b64_tr_b16 {v(r,2)}, {v(vTA+2*d)} offset:{kap*4096}")
        k(f"ds_read_b64_tr_b16 {v(r+2,2)}, {v(vTA+2*d+1)} offset:{kap*4096}")
        tH[f] = k.ltok()
    for f in range(6): hread(f)
    k.wait(vm=tk["F"])
    for f in range(16):
        kap, d = frs[f]
        r = 48 + 4 * (f % 8)
        k.wait(lg=tH[f])
        for part in range(2):
            z = Z + 16 * part + 4 * d
            c = "0" if kap == 0 else v(z, 4)
            k(f"{MF16} {v(z,4)}, {v(r,4)}, {v(vF+16*part+4*kap,4)}, {c}")
        if f + 6 < 16: hread(f + 6)
    stamp(k, "e_sa")
    tT = {}
    def tread(f):
        k(f"ds_read_b128 {v(112+4*(f%8),4)}, v10 offset:{f*1024}")
        tT[f] = k.ltok()
    k(f"v_add_u32 v10, 131072, {v(vL16)}")
    for f in range(6): tread(f)
    Zp, B2 = 216, 232
    pack(k, Zp, Z, 16)
    k(f"""s_cmp_eq_u32 {s(sWv)}, 0
    s_cselect_b32 s84, 0x00010001, 0
    s_mov_b32 s85, s84""")
    for i in range(8): k(f"v_cndmask_b32 {v(B2+i)}, {v(Zp+i)}, {v(Zp+8+i)}, s[84:85]")
    for i in range(8): k(f"v_cndmask_b32 {v(Zp+8+i)}, {v(Zp+8+i)}, 0, s[84:85]")
    k("s_mov_b32 s79, 0x80008000")
    for i in range(8): k(f"v_xor_b32 {v(B2+8+i)}, s79, {v(Zp+8+i)}")
    T1, T2 = 48, 80
    k(f"""v_and_b32 v12, 15, v0
    s_lshl_b32 s79, {s(sWv)}, 4
    v_add_u32 v12, s79, v12
    v_sub_u32 v11, 128, v12
    v_cmp_eq_u32 vcc, 0, v12
    v_cndmask_b32 v11, v11, 64, vcc
    v_lshrrev_b32 v13, 4, v0
    v_lshlrev_b32 v13, 4, v13
    v_lshl_add_u32 v12, v12, 16, v13
    v_lshl_add_u32 v11, v11, 16, v13
    s_lshl_b32 s79, {s(sR)}, 12
    s_lshl_b32 s80, {s(sG)}, 8
    s_add_u32 s79, s79, s80
    s_lshl_b32 s80, {s(sL)}, 23
    s_add_u32 s79, s79, s80
    s_add_u32 s79, s79, {TB}""")
    def tstore(i):
        pack(k, 144 + 4 * i, T1 + 8 * i, 4)
        pack(k, 160 + 4 * i, T2 + 8 * i, 4)
        k(f"buffer_store_dwordx4 {v(144+4*i,4)}, v12, {WS}, s79 offen offset:{64*i} sc1")
        k(f"buffer_store_dwordx4 {v(160+4*i,4)}, v11, {WS}, s79 offen offset:{64*i} sc1")
    for f in range(32):
        mt, kp = f >> 2, f & 3
        k.wait(lg=tT[f])
        for T, B in ((T1, Zp), (T2, B2)):
            c = "0" if kp == 0 else v(T + 4 * mt, 4)
            k(f"{MF16} {v(T+4*mt,4)}, {v(112+4*(f%8),4)}, {v(B+4*kp,4)}, {c}")
        if f + 6 < 32: tread(f + 6)
        if f in (13, 21, 29): tstore((f - 13) // 8)
    tstore(3)
    stamp(k, 11)

def grid_arrive(k):
    L = k.label("gb")
    k("s_waitcnt vmcnt(0)\ns_barrier")
    k.raw(f"""s_cmp_lg_u32 {s(sWv)}, 0
    s_cbranch_scc1 {L}_w
    s_lshl_b32 s83, {s(sL)}, 10
    s_add_u32 s83, s83, {CNT}
    s_and_b32 s79, s2, 7
    s_lshl_b32 s79, s79, 7
    v_mov_b32 v10, s79
    v_mov_b32 v11, 1
    s_mov_b64 exec, 1
    buffer_atomic_add v11, v10, {WS}, s83 offen sc1
    s_mov_b64 exec, -1
    {L}_w:""")

def grid_wait(k):
    L = k.label("gw")
    k.raw(f"""s_cmp_lg_u32 {s(sWv)}, 0
    s_cbranch_scc1 {L}_done
    v_min_u32 v10, 7, v0
    v_lshlrev_b32 v10, 7, v10
    s_mov_b32 {s(sSpin)}, {SPIN_MAX}
    {L}:
    buffer_load_dword v11, v10, {WS}, s83 offen sc1
    s_waitcnt vmcnt(0)
    v_cmp_ne_u32 vcc, 32, v11
    s_cbranch_vccz {L}_done
    s_sub_u32 {s(sSpin)}, {s(sSpin)}, 1
    s_cmp_lg_u32 {s(sSpin)}, 0
    s_cbranch_scc1 {L}
    {L}_done:
    s_barrier""")

def p3(k, cfg):
    grid_arrive(k)
    stamp(k, "gb_arr")
    TIM = LDS_BYTES - 16 * 4128
    STG = TIM - 16896; STAT = STG + 16640
    Lw = k.label("wpre")
    k(f"s_cmp_eq_u32 {s(sL)}, 1\ns_cbranch_scc1 {Lw}")
    sv0 = k.save()
    for j in range(16): k.raw(f"s_mov_b32 {s(sA0+j)}, {j*2048}\ns_mov_b32 {s(sWf0+j)}, {j*6144}")
    k.raw(f"s_mov_b32 {s(sSt0)}, 0")
    for j in range(4):
        for m0, ld in w_dma_items(j):
            if m0: k.raw(m0)
            k.raw(ld)
    k(f"{Lw}:")
    vC, vGm = 144, 240
    k(f"s_mov_b32 s81, {CTAB}")
    for f in range(16):
        off = f" offset:{(f&3)*1024}" if f & 3 else ""
        k(f"buffer_load_dwordx4 {v(vC+4*f,4)}, {v(vL16)}, {WS}, s81 offen{off} sc1")
        if f & 3 == 3 and f < 15: k("s_add_u32 s81, s81, 4096")
    tC = k.vtok()
    k(f"""s_lshr_b32 s79, {s(sG)}, 1
    s_lshl_b32 s79, s79, 4
    s_add_u32 s82, s79, {s(sR)}
    s_and_b32 s79, {s(sG)}, 1
    s_lshl_b32 s79, s79, 10
    s_add_u32 s79, s79, s82
    v_bfe_u32 v16, v0, 2, 2
    v_bfe_u32 v17, v0, 1, 1
    v_lshl_add_u32 v16, v17, 2, v16
    v_lshlrev_b32 v16, 7, v16
    v_add_u32 v16, s79, v16
    v_lshrrev_b32 v17, 4, v0
    v_lshlrev_b32 v17, 1, v17
    v_and_b32 v18, 1, v0
    v_cmp_eq_u32 s[84:85], 1, v18
    s_mov_b32 s79, 0x{f32(1/2048):08x}""")
    for i in range(4):
        c = (i & 1) + 8 * (i >> 1)
        k(f"""v_add_u32 {v(20+i)}, {c}, v17
        v_mul_u32_u24 {v(20+i)}, {v(20+i)}, v16
        v_and_b32 {v(20+i)}, 2047, {v(20+i)}
        v_cvt_f32_u32 {v(20+i)}, {v(20+i)}
        v_mul_f32 {v(20+i)}, s79, {v(20+i)}""")
    for i in range(4):
        k(f"v_cos_f32 {v(24+i)}, {v(20+i)}\nv_sin_f32 {v(28+i)}, {v(20+i)}")
    for i in range(4):
        k(f"""v_sub_f32 {v(32+i)}, 0, {v(28+i)}
        v_cndmask_b32 {v(36+i)}, {v(24+i)}, {v(32+i)}, s[84:85]
        v_cndmask_b32 {v(40+i)}, {v(28+i)}, {v(24+i)}, s[84:85]
        v_cvt_pk_bf16_f32 {v(vGm+i)}, {v(36+i)}, {v(40+i)}""")
    k(f"""v_lshrrev_b32 v12, 4, v0
    v_lshlrev_b32 v12, 11, v12
    v_and_b32 v13, 15, v0
    v_lshl_add_u32 v12, v13, 7, v12
    s_lshl_b32 s79, {s(sWv)}, 5
    v_add_u32 v12, s79, v12
    v_lshrrev_b32 v13, 4, v0
    v_lshlrev_b32 v13, 1, v13
    v_bfe_u32 v14, v0, 3, 1
    v_add_u32 v13, v13, v14
    v_mul_u32_u24 v13, 4128, v13
    v_bfe_u32 v14, v0, 2, 1
    v_lshl_add_u32 v13, v14, 7, v13
    v_and_b32 v14, 3, v0
    v_lshl_add_u32 v13, v14, 3, v13
    v_add_u32 v13, s79, v13
    s_lshl_b32 s84, s82, 16
    s_lshl_b32 s80, {s(sL)}, 23
    s_add_u32 s84, s84, s80
    s_add_u32 s84, s84, {TB}
    s_lshl_b32 s79, {s(sWv)}, 14
    s_add_u32 s84, s84, s79
    s_mul_i32 s81, {s(sWv)}, {4*4128}
    s_add_u32 s81, s81, {TIM}
    v_add_u32 v13, {TIM}, v13
    s_lshl_b32 s85, {s(sR)}, 7
    s_lshl_b32 s79, {s(sG)}, 3
    s_add_u32 s85, s85, s79
    s_lshl_b32 s85, s85, 11
    s_add_u32 s85, s85, s80
    s_add_u32 s85, s85, {XP + 0x400000}
    s_add_u32 s86, s85, 8192""")
    grid_wait(k)
    Lt = k.label("tagwb")
    k.raw(f"""s_or_b32 s79, s2, {s(sWv)}
    s_or_b32 s79, s79, {s(sL)}
    s_cmp_lg_u32 s79, 0
    s_cbranch_scc1 {Lt}
    v_mov_b32 v10, {s(sNonce)}
    v_mov_b32 v11, 0
    s_mov_b64 exec, 1
    buffer_store_dword v10, v11, {WS}, 0 offen sc1
    s_mov_b64 exec, -1
    {Lt}:""")
    stamp(k, 12)
    for b in range(4):
        k(f"s_add_u32 m0, s81, {b*4128}")
        for i in range(4):
            off = f" offset:{i*1024}" if i else ""
            k(f"buffer_load_dwordx4 {v(vL16)}, {WS}, s84 offen{off} sc1 lds")
        if b < 3: k("s_add_u32 s84, s84, 4096")
    tT = k.vtok()
    vR = 112
    for aa in range(2):
        for h in range(2):
            off = " offset:16" if h else ""
            k(f"buffer_load_dwordx4 {v(vR+8*aa+4*h,4)}, v12, {WS}, s{85+aa} offen{off} sc1")
    tRes = k.vtok()
    stamp(k, "p3_ld")
    k.wait(vm=tT)
    k("s_barrier")
    stamp(k, "p3_arr")
    U = 208
    tB = {}
    def bread(d):
        r = 48 + 4 * (d % 8)
        k(f"ds_read_b64_tr_b16 {v(r,2)}, v13 offset:{d*256}")
        k(f"ds_read_b64_tr_b16 {v(r+2,2)}, v13 offset:{d*256+33024}")
        tB[d] = k.ltok()
    for d in range(6): bread(d)
    D1 = 80
    def cvtU(e):
        for aa in range(2):
            k(f"v_cvt_pk_bf16_f32 {v(U+16*aa+e)}, {v(D1+4*(e%8)+2*aa)}, {v(D1+4*(e%8)+2*aa+1)}")
    for d in range(16):
        k.wait(lg=tB[d])
        k(f"{MF16} {v(D1+4*(d%8),4)}, {v(vGm,4)}, {v(48+4*(d%8),4)}, 0")
        if d + 6 < 16: bread(d + 6)
        if d >= 3: cvtU(d - 3)
    for e in range(13, 16): cvtU(e)
    stamp(k, "p3_s1")
    Y = 16
    for m in range(4):
        for aa in range(2):
            for st in range(4):
                y = Y + 16 * aa + 4 * st
                c = "0" if m == 0 else v(y, 4)
                k(f"{MF16} {v(y,4)}, {v(vC+16*st+4*m,4)}, {v(U+16*aa+4*m,4)}, {c}")
    k.wait(vm=tRes)
    k(f"v_mov_b32 v10, 0x{SEL_LO:08x}\nv_mov_b32 v11, 0x{SEL_HI:08x}")
    for aa in range(2):
        for e in range(16):
            k(f"v_dot2_f32_bf16 {v(Y+16*aa+e)}, {v(vR+8*aa+(e>>1))}, {v(10+(e&1))}, {v(Y+16*aa+e)}")
    stamp(k, 13)
    Lf, Le = k.label("fin"), k.label("p3end")
    k(f"s_cmp_eq_u32 {s(sL)}, 1\ns_cbranch_scc1 {Lf}")
    k(f"s_mov_b32 s66, {XP + 0x800000}\ns_mov_b32 s67, {HB + 0x400000}")
    sv = k.save()
    def after_h(tH):
        h_flag_addr(k, 80, FL_S5)
        k.wait(vm=tH)
        signal(k, 80)
    ln_tail(k, "mid", Y, STG, STAT, 66, 67, after_h)
    k("s_barrier")
    end = k.save()
    k(f"s_branch {Le}\n{Lf}:")
    k.restore(sv)
    ln_tail(k, "final", Y, STG, STAT, 66, 67)
    k(f"{Le}:")
    k.restore(end)
    stamp(k, 14)

def rest(k, cfg):
    k("L_LAYER:")
    p1(k, cfg)
    if cfg["stop"] == "p1": return
    p2(k, cfg)
    if cfg["stop"] == "p2": return
    p3(k, cfg)
    if cfg["stop"] == "p3": return
    k(f"""s_add_u32 {s(sL)}, {s(sL)}, 1
    s_cmp_eq_u32 {s(sL)}, 1
    s_cbranch_scc1 L_LAYER""")
```

```python
import sys, struct
sys.path.insert(0, "gen2")
from asm import K, v, a, s
from layout import *

NAME = "interleave_layers__linear_attn_block__spectral_fnet__prompt_kernel"
CFG = dict(stop=None, stamps=False)
def f32(x): return struct.unpack("<I", struct.pack("<f", x))[0]

SRD_WS, SRD_W, SRD_X, SRD_WO, SRD_OUT, SRD_DBG = 4, 8, 12, 16, 20, 24
sR, sG, sWv, sNonce, sL, sSt0 = 28, 29, 30, 31, 32, 33
sA0, sWf0 = 34, 50
sSpin = 95
sW12 = 94
WS, WQ, XS, WOS, OUTS, DBGS = (s(x, 4) for x in (SRD_WS, SRD_W, SRD_X, SRD_WO, SRD_OUT, SRD_DBG))
vLane, vL16, vW, vWq, vT = 0, 1, 2, 4, 6
vStamp = 255
SLOT, NRING = 16384, 9
TOP = NRING * SLOT
P0_X = 6 * SLOT
P0_WO = TOP
P0_STG = P0_X + 16896
P0_ST = P0_STG + 16384
LDS_BYTES = 163840
SPIN_MAX = 1 << 17
MF16 = "v_mfma_f32_16x16x32_bf16"
LOG2E, EPS6 = f32(1.4426950408889634), f32(1e-6)
SEL_LO, SEL_HI = 0x00003f80, 0x3f800000

MARKS = {}
def stamp(k, idx):
    if not CFG["stamps"]: return
    if isinstance(idx, str):
        if not CFG.get("marks"): return
        name = idx; idx = MARKS.setdefault(name, 16 + len(MARKS)); assert idx < 32
    k.raw(f"""s_memrealtime s[96:97]
    s_memtime s[98:99]
    s_lshl_b32 s100, {s(sL)}, 5
    s_add_u32 m0, s100, {idx}
    s_waitcnt lgkmcnt(0)
    v_writelane_b32 {v(vStamp)}, s96, m0
    v_writelane_b32 {v(vStamp-1)}, s98, m0""")

def srd(k, dst, lo, size):
    k(f"""s_mov_b32 {s(dst)}, {s(lo)}
    s_mov_b32 {s(dst+1)}, {s(lo+1)}
    s_mov_b32 {s(dst+2)}, {size}
    s_mov_b32 {s(dst+3)}, 0x00020000""")

def entry(k):
    k(f"""s_cmp_ge_u32 s2, 256
    s_cbranch_scc1 L_END
    s_load_dwordx2 s[66:67], s[0:1], 0
    s_load_dwordx2 s[68:69], s[0:1], 8
    s_load_dwordx2 s[70:71], s[0:1], 16
    s_load_dwordx4 s[72:75], s[0:1], 64
    s_load_dwordx2 s[76:77], s[0:1], 80
    v_lshrrev_b32 v1, 6, v0
    v_and_b32 v0, 63, v0
    v_readfirstlane_b32 {s(sWv)}, v1
    s_and_b32 s78, s2, 7
    s_lshr_b32 s79, s78, 1
    s_lshl_b32 s79, s79, 2
    s_lshr_b32 s80, s2, 6
    s_add_u32 {s(sR)}, s79, s80
    s_and_b32 s79, s2, 1
    s_lshl_b32 s79, s79, 3
    s_lshr_b32 s80, s2, 3
    s_and_b32 s80, s80, 7
    s_add_u32 {s(sG)}, s79, s80
    s_lshl_b32 s79, {s(sG)}, 1
    s_lshl_b32 s80, {s(sR)}, 2
    s_add_u32 s79, s79, s80
    s_and_b32 {s(sSt0)}, s79, {CFG.get('rotmask', 15)}
    s_mov_b32 {s(sL)}, 0
    s_mov_b32 {s(sNonce)}, 0
    v_lshlrev_b32 {v(vL16)}, 4, {v(vLane)}""")
    if CFG["stamps"]: k(f"v_mov_b32 {v(vStamp)}, 0\nv_mov_b32 {v(vStamp-1)}, 0")
    k("s_waitcnt lgkmcnt(0)")
    srd(k, SRD_X, 66, 4194304)
    srd(k, SRD_WS, 76, WS_SIZE)
    k(f"s_lshl_b32 {s(sW12)}, {s(sWv)}, 12")
    srd(k, SRD_W, 68, 6291456)
    srd(k, SRD_WO, 70, 2097152)
    srd(k, SRD_OUT, 72, 4194304)
    stamp(k, 0)

def entry_consts(k):
    for j in range(16):
        k(f"""s_add_u32 s79, {s(sSt0)}, {j}
        s_and_b32 s79, s79, 15
        s_lshl_b32 {s(sA0+j)}, s79, 11
        s_mul_i32 {s(sWf0+j)}, s79, 6144""")
    k(f"""v_lshrrev_b32 v10, 3, v0
    v_bfe_u32 v11, v0, 4, 1
    v_bfe_u32 v12, v0, 1, 2
    v_xor_b32 v11, v11, v12
    v_and_b32 v12, 1, v0
    v_lshlrev_b32 v12, 4, v12
    s_mov_b32 s79, {64*6144}
    v_mul_lo_u32 v10, s79, v10
    v_add_u32 v10, v10, v12
    s_mul_i32 s79, {s(sWv)}, {16*6144}
    s_lshl_b32 s80, {s(sG)}, 7
    s_add_u32 s79, s79, s80
    v_add_u32 v10, s79, v10
    v_lshl_add_u32 {v(vWq)}, v11, 5, v10
    v_xor_b32 v11, 2, v11
    v_lshl_add_u32 {v(vWq+1)}, v11, 5, v10
    v_add_u32 {v(vWq+1)}, {512*6144}, {v(vWq+1)}
    v_add_u32 {v(vW)}, 2048, {v(vWq)}
    v_add_u32 {v(vW+1)}, 2048, {v(vWq+1)}""")
    k(f"""v_lshrrev_b32 v10, 5, v0
    v_lshlrev_b32 v10, 12, v10
    v_bfe_u32 v11, v0, 4, 1
    v_lshl_add_u32 v10, v11, 10, v10
    v_bfe_u32 v12, v0, 2, 2
    v_lshl_add_u32 v10, v12, 7, v10
    v_and_b32 v12, 3, v0
    v_lshl_add_u32 v10, v12, 3, v10
    v_lshlrev_b32 v11, 1, v11
    v_bfe_u32 v12, v0, 3, 1
    v_or_b32 v11, v11, v12
    v_lshl_add_u32 {v(vT)}, v11, 5, v10""")
    for c in range(1, 4): k(f"v_xor_b32 {v(vT+c)}, {32*c}, {v(vT)}")

def slot_of(j): return 7 if j == 23 else j % NRING

def w_dma_items(j):
    slot = slot_of(j) * SLOT
    out = []
    if j < 16:
        for hb in range(2):
            out.append((f"s_add_u32 m0, {s(sW12)}, {slot + hb*1024}",
                        f"buffer_load_dwordx4 {v(vW+hb)}, {WQ}, {s(sWf0+j)} offen lds"))
            out.append((None, f"buffer_load_dwordx4 {v(vW+hb)}, {WQ}, {s(sWf0+j)} offen offset:2048 lds"))
    else:
        for sh in range(2):
            for hb in range(2):
                out.append((f"s_add_u32 m0, {s(sW12)}, {slot + sh*2048 + hb*1024}",
                            f"buffer_load_dwordx4 {v(vWq+hb)}, {WQ}, {s(sWf0 + 2*(j-16) + sh)} offen lds"))
    return out

def w_dma(k, j):
    for m0, ld in w_dma_items(j):
        if m0: k(m0)
        k(ld)
    return k.vtok()

def cos_table_block(k, vB, vM, vAdd, cj, addj, mask, scale, vout, vt, lanemask=None):
    k.raw(f"s_mov_b32 s79, 0x{scale:08x}")
    for j in range(8):
        t = vt + j
        k.raw(f"v_add_u32 {v(t)}, {cj[j]}, {v(vB)}")
        k.raw(f"v_mad_u32_u24 {v(t)}, {v(t)}, {v(vM)}, {v(vAdd)}")
        if addj[j]: k.raw(f"v_add_u32 {v(t)}, {addj[j]}, {v(t)}")
        k.raw(f"""v_and_b32 {v(t)}, {mask}, {v(t)}
        v_cvt_f32_u32 {v(t)}, {v(t)}
        v_mul_f32 {v(t)}, s79, {v(t)}""")
    for j in range(8): k.raw(f"v_cos_f32 {v(vt+j)}, {v(vt+j)}")
    if lanemask is not None:
        for j in range(8): k.raw(f"v_cndmask_b32 {v(vt+j)}, 0, {v(vt+j)}, {lanemask}")
    for i in range(4): k.raw(f"v_cvt_pk_bf16_f32 {v(vout+i)}, {v(vt+2*i)}, {v(vt+2*i+1)}")

def tables(k):
    Lf, Lc, Ld = k.label("ftab"), k.label("ctab"), k.label("tabdone")
    vB, vM, vAdd, vo, vt = 100, 101, 102, 104, 108
    k.raw(f"""s_cmp_ge_u32 {s(sWv)}, 2
    s_cbranch_scc1 {Lf}
    s_lshl_b32 s80, {s(sR)}, 1
    s_add_u32 s80, s80, {s(sWv)}
    s_lshr_b32 s81, s80, 2
    s_and_b32 s82, s80, 3
    s_lshr_b32 s83, s81, 1
    s_and_b32 s83, s83, 1
    s_lshl_b32 s83, s83, 5
    s_and_b32 s84, s81, 1
    s_lshl_b32 s84, s84, 2
    s_add_u32 s83, s83, s84
    s_lshr_b32 s84, s81, 2
    s_lshr_b32 s85, s82, 1
    s_sub_u32 s86, s84, s85
    s_lshl_b32 s86, s86, 8
    s_and_b32 s86, s86, 1023
    s_and_b32 s87, s82, 1
    s_lshl_b32 s87, s87, 5
    s_add_u32 s87, s87, {s(sG)}
    v_bfe_u32 v103, v0, 2, 2
    v_lshlrev_b32 v103, 3, v103
    v_and_b32 v104, 3, v0
    v_add_u32 v103, v103, v104
    v_add_u32 {v(vM)}, s83, v103
    v_lshrrev_b32 v103, 4, v0
    v_lshlrev_b32 v103, 8, v103
    v_add_u32 {v(vB)}, s87, v103
    v_mov_b32 {v(vAdd)}, s86""")
    cos_table_block(k, vB, vM, vAdd, [16 * (j >> 2) + 64 * (j & 3) for j in range(8)], [0] * 8, 1023, f32(1 / 1024), vo, vt)
    k.raw(f"""s_lshl_b32 s81, {s(sG)}, 15
    s_lshl_b32 s80, s80, 10
    s_add_u32 s80, s80, s81
    s_add_u32 s80, s80, {HTAB}
    buffer_store_dwordx4 {v(vo,4)}, {v(vL16)}, {WS}, s80 offen sc1
    s_branch {Ld}
    {Lf}:
    s_cmp_eq_u32 {s(sWv)}, 3
    s_cbranch_scc1 {Lc}
    s_cmp_ge_u32 s2, 32
    s_cbranch_scc1 {Ld}
    s_lshr_b32 s80, s2, 3
    s_lshl_b32 s80, s80, 4
    s_bfe_u32 s81, s2, 0x10002
    s_and_b32 s82, s2, 3
    s_lshl_b32 s82, s82, 1
    v_and_b32 v103, 15, v0
    v_add_u32 v103, s80, v103
    s_lshl_b32 s83, s81, 6
    s_lshl_b32 s84, s81, 5
    v_cmp_eq_u32 vcc, 0, v103
    v_mov_b32 v104, s83
    v_cndmask_b32 {v(vM)}, v103, v104, vcc
    v_mov_b32 v104, s84
    v_cndmask_b32 {v(vAdd)}, v104, 0, vcc
    v_lshrrev_b32 v103, 5, v0
    v_bfe_u32 v104, v0, 4, 1
    v_lshlrev_b32 v104, 6, v104
    v_add_u32 v103, v103, v104
    v_add_u32 {v(vB)}, s82, v103""")
    cos_table_block(k, vB, vM, vAdd, [8 * j for j in range(8)], [0] * 8, 127, f32(1 / 128), vo, vt)
    k.raw(f"""s_lshl_b32 s80, s2, 10
    s_add_u32 s80, s80, {FTAB}
    buffer_store_dwordx4 {v(vo,4)}, {v(vL16)}, {WS}, s80 offen sc1
    s_branch {Ld}
    {Lc}:
    s_cmp_ge_u32 s2, 16
    s_cbranch_scc1 {Ld}
    s_lshr_b32 s80, s2, 2
    s_lshl_b32 s80, s80, 2
    s_and_b32 s81, s2, 3
    s_lshl_b32 s81, s81, 2
    v_and_b32 v103, 3, v0
    v_add_u32 {v(vM)}, s80, v103
    v_mov_b32 {v(vB)}, s81
    v_mov_b32 {v(vAdd)}, 0
    v_lshrrev_b32 v103, 4, v0
    v_bfe_u32 v104, v0, 2, 2
    v_cmp_eq_u32 s[82:83], v103, v104""")
    cos_table_block(k, vB, vM, vAdd, [j >> 1 for j in range(8)], [12 * (j & 1) for j in range(8)], 15, f32(1 / 16), vo, vt,
                    lanemask="s[82:83]")
    k.raw(f"""s_lshl_b32 s80, s2, 10
    s_add_u32 s80, s80, {CTAB}
    buffer_store_dwordx4 {v(vo,4)}, {v(vL16)}, {WS}, s80 offen sc1
    {Ld}:""")

def pack(k, dst, src, n):
    for i in range(n): k(f"v_cvt_pk_bf16_f32 {v(dst+i)}, {v(src+2*i)}, {v(src+2*i+1)}")

def tree_sum(k, dst, regs, tmp):
    cur = list(regs); n = 0
    while len(cur) > 2:
        nxt = []
        for i in range(0, len(cur) - 1, 2):
            t = tmp + i // 2
            k(f"v_add_f32 {v(t)}, {v(cur[i])}, {v(cur[i+1])}"); nxt.append(t)
        if len(cur) & 1: nxt.append(cur[-1])
        cur = nxt
    k(f"v_add_f32 {v(dst)}, {v(cur[0])}, {v(cur[1])}")

def own_row0(k, dst):
    k(f"""s_lshr_b32 {s(dst)}, {s(sG)}, 1
    s_lshl_b32 {s(dst)}, {s(dst)}, 4
    s_add_u32 {s(dst)}, {s(dst)}, {s(sR)}
    s_and_b32 s78, {s(sG)}, 1
    s_lshl_b32 s78, s78, 10
    s_add_u32 {s(dst)}, {s(dst)}, s78""")

def ln_tail(k, mode, vX, stg, stat, sXP, sH, after_h=None):
    vP, vA, vB2, vS, vU, vQ = 48, 64, 65, 66, 70, 74
    if mode == "final":
        pack(k, vP, vX, 16)
        k(f"""v_lshrrev_b32 {v(vA)}, 4, v0
        v_mul_u32_u24 {v(vA)}, 2080, {v(vA)}
        v_and_b32 {v(vB2)}, 15, v0
        v_lshlrev_b32 {v(vB2)}, 1, {v(vB2)}
        v_add_u32 {v(vA)}, {v(vA)}, {v(vB2)}
        s_lshl_b32 s79, {s(sWv)}, 5
        s_add_u32 s79, s79, {stg}
        v_add_u32 {v(vA)}, s79, {v(vA)}""")
        for aa in range(2):
            for i in range(8):
                off = aa * 4 * 2080 + (2 * i) * 128
                k(f"ds_write_b16 {v(vA)}, {v(vP+8*aa+i)} offset:{off}")
                k(f"ds_write_b16_d16_hi {v(vA)}, {v(vP+8*aa+i)} offset:{off+128}")
        k("s_waitcnt lgkmcnt(0)\ns_barrier")
        k(f"""s_mul_i32 s79, {s(sWv)}, {2*2080}
        s_add_u32 s79, s79, {stg}
        v_add_u32 {v(vA)}, s79, {v(vL16)}""")
        for i, off in enumerate((0, 1024, 2080, 3104)):
            k(f"ds_read_b128 {v(vP+4*i,4)}, {v(vA)} offset:{off}")
        own_row0(k, 79)
        k(f"""s_lshl_b32 s80, {s(sWv)}, 8
        s_add_u32 s79, s79, s80
        s_lshl_b32 s79, s79, 11
        s_add_u32 s80, s79, {128*2048}
        s_waitcnt lgkmcnt(0)
        buffer_store_dwordx4 {v(vP,4)}, {v(vL16)}, {OUTS}, s79 offen
        buffer_store_dwordx4 {v(vP+4,4)}, {v(vL16)}, {OUTS}, s79 offen offset:1024
        buffer_store_dwordx4 {v(vP+8,4)}, {v(vL16)}, {OUTS}, s80 offen
        buffer_store_dwordx4 {v(vP+12,4)}, {v(vL16)}, {OUTS}, s80 offen offset:1024""")
        return
    for aa in range(2): tree_sum(k, vS + aa, range(vX + 16 * aa, vX + 16 * aa + 16), 80 + 8 * aa)
    def rowsum2(r0, t0):
        cur, nxt = r0, t0
        for sh in (8, 4, 2, 1):
            for aa in range(2):
                k(f"v_add_f32_dpp {v(nxt+aa)}, {v(cur+aa)}, {v(cur+aa)} row_ror:{sh} row_mask:0xf bank_mask:0xf")
            cur, nxt = nxt, cur
        return cur
    m = rowsum2(vS, vU)
    for aa in range(2): k(f"v_mul_f32 {v(vQ+2*aa)}, 0x{f32(1/256):08x}, {v(m+aa)}")
    for aa in range(2):
        for i in range(16): k(f"v_sub_f32 {v(80+16*aa+i)}, {v(vX+16*aa+i)}, {v(vQ+2*aa)}")
    for aa in range(2):
        d = 80 + 16 * aa
        for c in range(4): k(f"v_mul_f32 {v(112+4*aa+c)}, {v(d+c)}, {v(d+c)}")
        for i in range(4, 16): k(f"v_fmac_f32 {v(112+4*aa+(i&3))}, {v(d+i)}, {v(d+i)}")
        tree_sum(k, vS + aa, range(112 + 4 * aa, 116 + 4 * aa), 120 + 2 * aa)
    m = rowsum2(vS, vU)
    for aa in range(2): k(f"v_mov_b32 {v(vQ+2*aa+1)}, {v(m+aa)}")
    k(f"""v_lshrrev_b32 {v(vU)}, 4, v0
    v_lshlrev_b32 {v(vU)}, 5, {v(vU)}
    s_lshl_b32 s79, {s(sWv)}, 3
    s_add_u32 s79, s79, {stat}
    v_add_u32 {v(vU+1)}, s79, {v(vU)}
    s_mov_b32 exec_lo, 0x00010001
    s_mov_b32 exec_hi, 0x00010001
    ds_write_b64 {v(vU+1)}, {v(vQ,2)}
    ds_write_b64 {v(vU+1)}, {v(vQ+2,2)} offset:128
    s_mov_b64 exec, -1
    v_add_u32 {v(vU)}, {stat}, {v(vU)}""")
    pack(k, vP, vX, 16)
    k(f"""v_and_b32 {v(vA)}, 15, v0
    v_and_b32 {v(vB2)}, 7, v0
    s_lshl_b32 s79, {s(sWv)}, 1
    v_xor_b32 {v(vB2)}, s79, {v(vB2)}
    v_lshl_add_u32 {v(vA)}, {v(vA)}, 3, {v(vB2)}
    v_lshlrev_b32 {v(vA)}, 4, {v(vA)}
    v_lshrrev_b32 {v(vB2)}, 4, v0
    v_lshl_add_u32 {v(vA)}, {v(vB2)}, 11, {v(vA)}
    v_add_u32 {v(vA)}, {stg}, {v(vA)}
    v_xor_b32 {v(vB2)}, 16, {v(vA)}""")
    for aa in range(2):
        k(f"ds_write_b128 {v(vA)}, {v(vP+8*aa,4)} offset:{aa*8192}")
        k(f"ds_write_b128 {v(vB2)}, {v(vP+8*aa+4,4)} offset:{aa*8192}")
    k("s_waitcnt lgkmcnt(0)\ns_barrier")
    stamp(k, "ln_bar")
    vR = 80
    for aa in range(2):
        k(f"ds_read_b128 {v(vR+8*aa,4)}, {v(vU)} offset:{aa*128}")
        k(f"ds_read_b128 {v(vR+8*aa+4,4)}, {v(vU)} offset:{aa*128+16}")
    tS = k.ltok()
    vRB = 96
    k(f"""s_lshl_b32 s79, {s(sWv)}, 12
    s_add_u32 s79, s79, {stg}
    v_add_u32 {v(vA)}, s79, {v(vL16)}""")
    for i in range(4): k(f"ds_read_b128 {v(vRB+4*i,4)}, {v(vA)} offset:{i*1024}")
    tRB = k.ltok()
    k(f"""v_and_b32 {v(vA)}, 15, v0
    v_lshlrev_b32 {v(vA)}, 11, {v(vA)}
    v_lshrrev_b32 {v(vB2)}, 4, v0
    v_lshl_add_u32 {v(vA)}, {v(vB2)}, 4, {v(vA)}
    s_lshr_b32 s79, {s(sWv)}, 1
    s_lshl_b32 s79, s79, 10
    s_and_b32 s80, {s(sWv)}, 1
    s_lshl_b32 s80, s80, 9
    s_add_u32 s79, s79, s80
    v_add_u32 {v(vA)}, s79, {v(vA)}
    s_lshl_b32 s79, {s(sR)}, 3
    s_lshr_b32 s80, {s(sG)}, 1
    s_add_u32 s79, s79, s80
    s_lshl_b32 s79, s79, 15
    s_and_b32 s80, {s(sG)}, 1
    s_lshl_b32 s80, s80, 7
    s_add_u32 s79, s79, s80
    s_add_u32 s79, s79, {s(sH)}""")
    k.wait(lg=tS)
    vM_, vRs = 112, 114
    for aa in range(2):
        b = vR + 8 * aa
        k(f"""v_add_f32 {v(vU)}, {v(b)}, {v(b+2)}
        v_add_f32 {v(vU+1)}, {v(b+4)}, {v(b+6)}
        v_add_f32 {v(vU+2)}, {v(b+1)}, {v(b+3)}
        v_add_f32 {v(vU+3)}, {v(b+5)}, {v(b+7)}
        v_add_f32 {v(vU)}, {v(vU)}, {v(vU+1)}
        v_add_f32 {v(vU+2)}, {v(vU+2)}, {v(vU+3)}
        v_mul_f32 {v(vM_+aa)}, 0.25, {v(vU)}""")
        for i in range(4): k(f"v_sub_f32 {v(b+2*i)}, {v(b+2*i)}, {v(vM_+aa)}")
        k(f"""v_mul_f32 {v(vU)}, {v(b)}, {v(b)}
        v_mul_f32 {v(vU+1)}, {v(b+2)}, {v(b+2)}
        v_fmac_f32 {v(vU)}, {v(b+4)}, {v(b+4)}
        v_fmac_f32 {v(vU+1)}, {v(b+6)}, {v(b+6)}
        v_add_f32 {v(vU)}, {v(vU)}, {v(vU+1)}
        v_fmac_f32 {v(vU+2)}, 0x{f32(256.0):08x}, {v(vU)}
        v_mov_b32 {v(vU+1)}, 0x{f32(1e-5):08x}
        v_fmac_f32 {v(vU+1)}, 0x{f32(1/1024):08x}, {v(vU+2)}
        v_rsq_f32 {v(vRs+aa)}, {v(vU+1)}""")
    for aa in range(2): k(f"v_mul_f32 {v(vM_+aa)}, {v(vM_+aa)}, {v(vRs+aa)}")
    for aa in range(2):
        for i in range(16):
            k(f"v_fma_f32 {v(vX+16*aa+i)}, {v(vX+16*aa+i)}, {v(vRs+aa)}, -{v(vM_+aa)}")
    pack(k, vP, vX, 16)
    for aa in range(2):
        for hb in range(2):
            k(f"buffer_store_dwordx4 {v(vP+8*aa+4*hb,4)}, {v(vA)}, {WS}, s79 offen offset:{hb*256+aa*64} sc1")
    tH = k.vtok()
    stamp(k, "ln_h")
    if after_h: after_h(tH)
    k(f"""v_lshrrev_b32 {v(vB2)}, 3, v0
    v_xor_b32 {v(vB2)}, {v(vB2)}, v0
    v_and_b32 {v(vB2)}, 7, {v(vB2)}
    v_and_b32 {v(vA)}, 56, v0
    v_or_b32 {v(vB2)}, {v(vB2)}, {v(vA)}
    v_lshlrev_b32 {v(vB2)}, 4, {v(vB2)}
    s_lshl_b32 s79, {s(sR)}, 7
    s_lshl_b32 s80, {s(sG)}, 3
    s_add_u32 s79, s79, s80
    s_lshl_b32 s80, {s(sWv)}, 1
    s_add_u32 s79, s79, s80
    s_lshl_b32 s79, s79, 11
    s_add_u32 s79, s79, {s(sXP)}""")
    k.wait(lg=tRB)
    for i in range(4):
        k(f"buffer_store_dwordx4 {v(vRB+4*i,4)}, {v(vB2)}, {WS}, s79 offen offset:{i*1024} sc1")

def signal(k, soff):
    k.raw(f"""v_mov_b32 v10, {s(sNonce)}
    v_mov_b32 v11, 0
    s_mov_b64 exec, 1
    buffer_store_dword v10, v11, {WS}, {s(soff)} offen sc1
    s_mov_b64 exec, -1""")

def poll16(k, soff):
    L = k.label("poll")
    k.raw(f"""v_and_b32 v10, 15, v0
    v_lshlrev_b32 v10, 2, v10
    s_mov_b32 {s(sSpin)}, {SPIN_MAX}
    {L}:
    buffer_load_dword v11, v10, {WS}, {s(soff)} offen sc1
    s_waitcnt vmcnt(0)
    v_cmp_ne_u32 vcc, {s(sNonce)}, v11
    s_cbranch_vccz {L}_done
    s_sub_u32 {s(sSpin)}, {s(sSpin)}, 1
    s_cmp_lg_u32 {s(sSpin)}, 0
    s_cbranch_scc1 {L}
    {L}_done:""")
    k.vm_done = k.vm

def h_flag_addr(k, dst, base):
    k(f"""s_lshl_b32 {s(dst)}, {s(sR)}, 2
    s_lshr_b32 s78, {s(sG)}, 2
    s_add_u32 {s(dst)}, {s(dst)}, s78
    s_lshl_b32 {s(dst)}, {s(dst)}, 7
    s_and_b32 s78, {s(sG)}, 3
    s_lshl_b32 s78, s78, 2
    s_add_u32 s78, s78, {s(sWv)}
    s_lshl_b32 s78, s78, 2
    s_add_u32 {s(dst)}, {s(dst)}, s78
    s_add_u32 {s(dst)}, {s(dst)}, {base}""")

def p0(k):
    own_row0(k, 79)
    k(f"""s_lshl_b32 s80, {s(sWv)}, 8
    s_add_u32 s79, s79, s80
    s_lshl_b32 s79, s79, 11
    s_add_u32 s80, s79, {128*2048}
    s_mul_i32 s81, {s(sWv)}, {2*2080}
    s_add_u32 m0, s81, {P0_X}
    buffer_load_dwordx4 {v(vL16)}, {XS}, s79 offen lds
    buffer_load_dwordx4 {v(vL16)}, {XS}, s79 offen offset:1024 lds
    s_add_u32 m0, s81, {P0_X + 2080}
    buffer_load_dwordx4 {v(vL16)}, {XS}, s80 offen lds
    buffer_load_dwordx4 {v(vL16)}, {XS}, s80 offen offset:1024 lds""")
    tx = k.vtok()
    k(f"""v_mov_b32 v14, 0
    buffer_load_dword v15, v14, {WS}, 0 offen sc1""")
    tTag = k.vtok()
    Lz = k.label("zero")
    k.raw(f"""s_cmp_lg_u32 s2, 0
    s_cbranch_scc1 {Lz}
    s_cmp_lg_u32 {s(sWv)}, 3
    s_cbranch_scc1 {Lz}
    s_mov_b64 exec, 0xffff
    v_lshlrev_b32 v16, 7, v0
    v_mov_b32 v17, 0
    s_mov_b32 s79, {CNT}
    buffer_store_dword v17, v16, {WS}, s79 offen sc1
    s_mov_b64 exec, -1
    {Lz}:""")
    entry_consts(k)
    tables(k)
    stamp(k, 2)
    k.wait(vm=tx)
    k("s_barrier")
    stamp(k, 3)
    vX = 16
    k(f"""v_lshrrev_b32 v10, 4, v0
    v_mul_u32_u24 v10, 2080, v10
    v_and_b32 v11, 15, v0
    v_lshlrev_b32 v11, 1, v11
    v_add_u32 v10, v10, v11
    s_lshl_b32 s79, {s(sWv)}, 5
    s_add_u32 s79, s79, {P0_X}
    v_add_u32 v10, s79, v10""")
    gt = []
    for aa in range(2):
        for e2 in range(16):
            k(f"ds_read_u16 {v(vX+16*aa+e2)}, v10 offset:{aa*4*2080 + e2*128}")
            gt.append(k.ltok())
    for i in range(32):
        k.wait(lg=gt[i])
        k(f"v_lshlrev_b32 {v(vX+i)}, 16, {v(vX+i)}")
    stamp(k, 4)
    k(f"s_mov_b32 s66, {XP}\ns_mov_b32 s67, {HB}")
    k.wait(vm=tTag)
    k(f"""v_add_u32 v15, 16, v15
    s_nop 0
    v_readfirstlane_b32 {s(sNonce)}, v15""")
    tk = {}
    def wo_rows():
        k(f"""s_lshr_b32 s79, s2, 3
        s_lshl_b32 s79, s79, 5
        s_bfe_u32 s80, s2, 0x20001
        s_lshl_b32 s80, s80, 2
        s_add_u32 s79, s79, s80
        s_and_b32 s80, {s(sWv)}, 1
        s_lshl_b32 s80, s80, 1
        s_add_u32 s79, s79, s80
        s_lshr_b32 s80, {s(sWv)}, 1
        s_lshl_b32 s80, s80, 4
        s_add_u32 s79, s79, s80
        s_lshl_b32 s79, s79, 11
        s_add_u32 s80, s79, 2048
        s_lshl_b32 s81, {s(sWv)}, 12
        s_add_u32 m0, s81, {P0_WO}
        buffer_load_dwordx4 {v(vL16)}, {WOS}, s79 offen lds
        buffer_load_dwordx4 {v(vL16)}, {WOS}, s79 offen offset:1024 lds
        s_add_u32 m0, s81, {P0_WO + 2048}
        buffer_load_dwordx4 {v(vL16)}, {WOS}, s80 offen lds
        buffer_load_dwordx4 {v(vL16)}, {WOS}, s80 offen offset:1024 lds""")
        tk['wo'] = k.vtok()
    def after_h(tH):
        h_flag_addr(k, 80, FL_A0)
        k.wait(vm=tH)
        signal(k, 80)
        stamp(k, 1)
        for j in range(2): w_dma(k, j)
        wo_rows()
    ln_tail(k, "mid", vX, P0_STG, P0_ST, 66, 67, after_h)
    stamp(k, 5)
    k("s_barrier")
    stamp(k, 6)

def wo_gather(k):
    k.raw(f"""v_bfe_u32 v10, v0, 2, 2
    v_lshlrev_b32 v11, 5, v10
    v_lshrrev_b32 v12, 4, v0
    v_lshlrev_b32 v12, 2, v12
    v_and_b32 v13, 3, v0
    v_add_u32 v12, v12, v13
    v_lshl_add_u32 v11, v12, 7, v11
    s_and_b32 s79, s2, 1
    s_lshl_b32 s79, s79, 3
    s_add_u32 s79, s79, {s(sWv)}
    s_lshl_b32 s80, s79, 1
    s_add_u32 s80, s80, {P0_WO}
    v_add_u32 v11, s80, v11
    v_lshrrev_b32 v12, 4, v0
    v_lshlrev_b32 v12, 15, v12
    v_and_b32 v13, 15, v0
    v_lshl_add_u32 v12, v13, 4, v12
    s_lshl_b32 s79, s79, 17
    s_lshr_b32 s80, s2, 3
    s_lshl_b32 s80, s80, 10
    s_add_u32 s79, s79, s80
    s_bfe_u32 s80, s2, 0x20001
    s_lshl_b32 s80, s80, 8
    s_add_u32 s79, s79, s80
    s_add_u32 s79, s79, {WOP}
    s_add_u32 s80, s79, {4 << 17}""")
    for t in range(2):
        for j in range(8):
            op = "ds_read_u16_d16_hi" if j & 1 else "ds_read_u16"
            k.raw(f"{op} {v(16+8*(j&1)+4*t+(j>>1))}, v11 offset:{j*2048 + 8*t}")
        k.raw("s_waitcnt lgkmcnt(0)")
    for i in range(8): k.raw(f"v_or_b32 {v(16+i)}, {v(16+i)}, {v(24+i)}")
    k.raw(f"""buffer_store_dwordx4 v[16:19], v12, {WS}, s79 offen sc1
    buffer_store_dwordx4 v[20:23], v12, {WS}, s80 offen sc1
""")

def finish(k):
    if CFG["stamps"]:
        L = k.label("st")
        k.raw(f"""s_cmp_lg_u32 {s(sWv)}, 0
        s_cbranch_scc1 {L}
        s_lshl_b32 s79, s2, 9
        s_add_u32 s79, s79, {STAMPS}
        v_lshlrev_b32 v10, 2, v0
        buffer_store_dword {v(vStamp)}, v10, {WS}, s79 offen
        buffer_store_dword {v(vStamp-1)}, v10, {WS}, s79 offen offset:256
        {L}:""")
    k.raw("s_waitcnt vmcnt(0) lgkmcnt(0)\nL_END:\ns_endpgm")

HEADER = """; Kernarg layout (88 bytes): A_x, A_wqkv, A_wo, B_x, dft_seq_re, dft_seq_im, dft_hid_re, dft_hid_im, d_out, d_debug, d_ws
; @launch grid=(256,1,1) block=(256,1,1) lds=%d
.amdgcn_target "amdgcn-amd-amdhsa--gfx950"
.text
.globl %s
.p2align 8
.type %s,@function
%s:
"""
FOOTER = """
.section .rodata,"a"
.p2align 6
.amdhsa_kernel %s
  .amdhsa_next_free_vgpr 512
  .amdhsa_next_free_sgpr 102
  .amdhsa_accum_offset 256
  .amdhsa_group_segment_fixed_size 0
  .amdhsa_kernarg_size 88
  .amdhsa_user_sgpr_count 2
  .amdhsa_user_sgpr_kernarg_segment_ptr 1
  .amdhsa_system_sgpr_workgroup_id_x 1
  .amdhsa_float_denorm_mode_32 3
.end_amdhsa_kernel
"""

def build(**cfg):
    CFG.update(cfg)
    k = K()
    entry(k)
    p0(k)
    if CFG["stop"] != "p0":
        import phases
        phases.rest(k, CFG)
    finish(k)
    return HEADER % (LDS_BYTES, NAME, NAME, NAME) + k.text() + FOOTER % NAME

if __name__ == "__main__":
    import argparse
    ap = argparse.ArgumentParser()
    ap.add_argument("-o", default="interleave_layers__linear_attn_block__spectral_fnet__prompt.s")
    ap.add_argument("--stop", default=None)
    ap.add_argument("--stamps", action="store_true")
    ap.add_argument("--x", default="")
    x = ap.parse_args()
    import gen as g
    extra = {}
    for t in x.x.split(","):
        if t:
            kk, _, vv = t.partition("=")
            extra[kk] = int(vv) if vv else True
    txt = g.build(stop=x.stop, stamps=x.stamps, **extra)
    open(x.o, "w").write(txt)
    print("wrote", x.o, len(txt), "bytes,", txt.count("\n"), "lines", g.MARKS)
    import json; json.dump(g.MARKS, open(x.o + ".marks", "w"))
```
